```python
import torch

def _softmax(x, axis=-1):
    return torch.softmax(x, dim=axis)
def _gelu(x):
    return torch.nn.functional.gelu(x, approximate="tanh")
def _silu(x):
    return torch.nn.functional.silu(x)
def _sigmoid(x):
    return torch.sigmoid(x)
def _layernorm(x, axis=-1, eps=1e-5):
    m = x.mean(dim=axis, keepdim=True)
    v = x.var(dim=axis, keepdim=True, unbiased=False)
    return (x - m) / torch.sqrt(v + eps)
def _scatter_add(tgt, idx, src, axis=0):
    return tgt.clone().index_add_(axis, idx, src)
def _segment_sum(src, seg, n):
    out = torch.zeros((n,) + src.shape[1:], dtype=src.dtype)
    return out.index_add_(0, seg, src)
def _pad(x, pw):
    flat = tuple(v for pair in reversed(pw) for v in pair)
    return torch.nn.functional.pad(x, flat)

kernel_name = 'standalone__mha_softmax__near_ridge'

def setup_inputs():

    _w = (lambda a: (lambda t: t.to(torch.bfloat16) if t.is_floating_point() else t)(torch.as_tensor(a)))
    B, H, Sq, Sk, D = 8, 32, 576, 1024, 128
    return {
        "q": _w((lambda *s: torch.randn(*s, dtype=torch.bfloat16) * 0.8)(B, H, Sq, D)),
        "k": _w((lambda *s: torch.randn(*s, dtype=torch.bfloat16) * 0.8)(B, H, Sk, D)),
        "v": _w((lambda *s: torch.randn(*s, dtype=torch.bfloat16) * 0.05)(B, H, Sk, D)),
    }

def reference(q, k, v):
    scale = q.shape[-1] ** -0.5
    scores = torch.einsum("bhqd,bhkd->bhqk", q, k) * scale
    p = _softmax(scores, axis=-1)
    return torch.einsum("bhqk,bhkd->bhqd", p, v)
```

```python
import sys, argparse

KNAME = "standalone__mha_softmax__near_ridge_kernel"
NHEAD = 256; SQ = 576; SK = 1024; D = 128
Q_BYTES = NHEAD * SQ * D * 2
KV_BYTES = NHEAD * SK * D * 2
HEAD_KV = SK * D * 2
HEAD_Q = SQ * D * 2
BIAS = 896

S_QSRD = 12; S_KVSRD = 16; S_OSRD = 20
S_W = 24; S_OFF = 25; S_D4 = 26; S_D6 = 27; S_CNT = 28; S_BLK = 29; S_ROLE = 30; S_HEAD = 31
S_QO = 32; S_T0 = 33; S_T1 = 34; S_T2 = 35; S_T3 = 36; S_T4 = 37
S_SCALE = 40; S_THR = 41; S_RETRY = 42; S_OFF0 = 43; S_M0BASE = 44
S_STAMP = 48
V_TID = 0; V_T0 = 1; V_T1 = 2; V_T2 = 3
V_AK = 4
V_AV = 6
V_DMA = 10
V_QOFF = 14; V_OOFF = 15
V_NEGM = 16
V_S = 36
V_P = 76
V_TMP = 116
V_O = 128
A_Q = 0
A_K = 80
A_V = 112
A_L = 144
A_ONES = 164
A_O4 = 168

def vr(b, n=1): return f"v{b}" if n == 1 else f"v[{b}:{b+n-1}]"
def ar(b, n=1): return f"a{b}" if n == 1 else f"a[{b}:{b+n-1}]"
def sr(b, n=1): return f"s{b}" if n == 1 else f"s[{b}:{b+n-1}]"

def rS(t, kt, r=None):
    b = V_S + t * 8 + kt * 4
    return vr(b, 4) if r is None else vr(b + r)
def rP(par, n, t, j=None):
    b = V_P + par * 20 + t * 4
    return vr(b, 4) if j is None else vr(b + j)
def rNEGM(t): return vr(V_NEGM + 4 * t, 4)
def rO(t, dt, r=None):
    if t < 4:
        b = V_O + t * 32 + dt * 4
        return vr(b, 4) if r is None else vr(b + r)
    b = A_O4 + dt * 4
    return ar(b, 4) if r is None else ar(b + r)
def rQ(t, c): return ar(A_Q + t * 16 + c * 4, 4)
def rK(kt, c): return ar(A_K + (kt * 4 + c) * 4, 4)
def rV(dt, h=None):
    b = A_V + dt * 4
    return ar(b, 4) if h is None else ar(b + 2 * h, 2)
def rL(t): return ar(A_L + 4 * t, 4)

class Opt: pass

def mfma_list(n, o):
    L = []
    if o.qk_order == "t":
        for t in range(n):
            for kt in range(2):
                for c in range(4): L.append(("QK", t, kt, c))
    else:
        for kt in range(2):
            for c in range(4):
                for t in range(n): L.append(("QK", t, kt, c))
    for t in range(n): L.append(("L", t))
    if o.pv_order == "dt":
        for dt in range(8):
            for t in range(n): L.append(("PV", t, dt))
    else:
        for t in range(n):
            for dt in range(8): L.append(("PV", t, dt))
    return L

def build_schedule(n, o):
    mf = mfma_list(n, o)
    G = len(mf)
    LAT = o.lat_exp
    idx = {m: i for i, m in enumerate(mf)}
    nE = 8 * n
    isE = [False] * G
    for k in range(nE):
        isE[(int((k + 0.0) * G / nE) + o.ephase) % G] = True
    assert sum(isE) == nE
    gaps = [[] for _ in range(G)]
    cap = [0 if isE[g] else 2 for g in range(G)]
    order = []
    for t in range(n):
        for kt in range(2):
            order.append((idx[("QK", t, kt, 3)] + LAT, t, kt))
    order.sort()
    pos = -1
    exp_pos = {}
    for (rdy, t, kt) in order:
        for r in range(4):
            pos = max(pos + 1, rdy if o.exp_asap or pos < 0 else pos + 1)
            while not (isE[pos % G] and not gaps[pos % G]): pos += 1
            assert pos >= rdy, (pos, rdy)
            gaps[pos % G].append(dict(k="exp", t=t, kt=kt, r=r, old=(pos >= G)))
            exp_pos[(t, kt, r)] = pos
            assert pos < G + idx[("QK", t, kt, 0)], ("exp deadline", t, kt, r, pos)
    assert all(len(gaps[g]) == 1 for g in range(G) if isE[g])
    def place(item, lo, hi, want_first=False, valu=False, alone=False, rev=False):
        rng = range(lo, hi + 1) if not rev else range(hi, lo - 1, -1)
        for p in rng:
            g = p % G
            if isE[g]: continue
            if alone:
                if cap[g] == 2:
                    cap[g] = 0; gaps[g].append(item); item["pos"] = p; return p
                continue
            if cap[g] == 0: continue
            if item["k"] in ("dsK", "dsV"):
                if any(x["k"] == "dma" for x in gaps[g]): continue
                cap[g] -= 1; gaps[g].insert(0, item) if any(x["k"] in ("cvt", "vxor") for x in gaps[g]) else gaps[g].append(item); item["pos"] = p; return p
            cap[g] -= 1; gaps[g].append(item); item["pos"] = p; return p
        raise RuntimeError(f"cannot place {item} in [{lo},{hi}]")
    assert not isE[G - 1]
    cap[G - 1] = 0; gaps[G - 1].append(dict(k="ctl"))
    for (rdy, t, kt) in order:
        for jj in range(2):
            p = exp_pos[(t, kt, 2 * jj + 1)]
            it = dict(k="cvt", t=t, j=kt * 2 + jj)
            pp = place(it, p + 1, p + 6)
            it["old"] = pp >= G
            assert pp < G + idx[("QK", t, kt, 0)], "cvt deadline (S overwrite)"
            first_use = min(i for i, m in enumerate(mf) if (m[0] == "L" and m[1] == t) or (m[0] == "PV" and m[1] == t))
            assert pp + 1 < G + first_use, "cvt deadline (P use)"
    first_dma = o.dma_start
    step = o.dma_step if o.dma_step else max(2, (G - 12 - first_dma) // 4)
    pm0 = place(dict(k="m0"), 0, G - 1)
    first_dma = max(first_dma, pm0 + 1)
    p = first_dma
    lastdma = 0
    for b in range(4):
        lastdma = place(dict(k="dma", b=b), p, G - 3, alone=True)
        p = lastdma + step
    place(dict(k="soff"), lastdma + 1, G - 1)
    for p in range(G - o.bar_back, lastdma, -1):
        g = p % G
        if not isE[g] and cap[g] == 2:
            cap[g] = 0; gaps[g] += [dict(k="vmwait"), dict(k="bar")]; barpos = p; break
    else: raise RuntimeError("no barrier slot")
    firstV = {dt: min(i for i, m in enumerate(mf) if m[0] == "PV" and m[2] == dt) for dt in range(8)}
    lastV = {dt: max(i for i, m in enumerate(mf) if m[0] == "PV" and m[2] == dt) for dt in range(8)}
    dsseq = []
    p = o.v_start
    vstep = o.v_step
    for dt in range(8):
        for h in range(2):
            it = dict(k="dsV", dt=dt, h=h)
            pp = place(it, p, firstV[dt] - o.lat_ds)
            p = max(p, pp) + (vstep if h == 1 else 0)
    lastK = {(kt, c): max(i for i, m in enumerate(mf) if m[0] == "QK" and m[2] == kt and m[3] == c) for kt in range(2) for c in range(4)}
    firstK = {(kt, c): min(i for i, m in enumerate(mf) if m[0] == "QK" and m[2] == kt and m[3] == c) for kt in range(2) for c in range(4)}
    p = max(8 * n + o.k_start, 0)
    for kt in range(2):
        for c in range(4):
            it = dict(k="dsK", kt=kt, c=c)
            pp = place(it, max(p, lastK[(kt, c)]), G + firstK[(kt, c)] - o.lat_ds)
            assert pp < G, "K read wrapped into next iteration"
            p = pp + o.k_step
    for grp in o.vwait_groups:
        need = min(firstV[dt] for dt in grp)
        it = dict(k="wait", need=[("V", dt, h) for dt in grp for h in range(2)])
        place(it, need - 1 - 6, need - 1, rev=True)
    it = dict(k="wait", need=[("K", kt, c) for kt in range(2) for c in range(4)], kwait=True)
    place(it, G - 10, G - 2, rev=True)
    lastds = max(x["pos"] for g in gaps for x in g if x["k"] in ("dsK", "dsV"))
    firstds = min(x["pos"] for g in gaps for x in g if x["k"] in ("dsK", "dsV"))
    lastdsV = max(x["pos"] for g in gaps for x in g if x["k"] == "dsV")
    lastdsK = max(x["pos"] for g in gaps for x in g if x["k"] == "dsK")
    lx = 0
    for i in range(4): lx = max(lx, place(dict(k="vxor", reg=V_AV + i, odd=True), lastdsV + 1, G - 1))
    for i in range(2): lx = max(lx, place(dict(k="vxor", reg=V_AK + i, odd=True), lastdsK + 1, G - 1))
    place(dict(k="sxor4"), lx + 1, G - 1)
    place(dict(k="sxor6"), pm0 + 1, G - 1)
    return mf, gaps, cap

def describe(n, o):
    mf, gaps, cap = build_schedule(n, o)
    for g, m in enumerate(mf):
        print(g, m, [ (x["k"], x.get("t", ""), x.get("dt", x.get("kt", x.get("j", x.get("b", ""))))) for x in gaps[g]], "free", cap[g])

class Em:
    def __init__(self): self.l = []
    def __call__(self, s): self.l.append("  " + s)
    def label(self, s): self.l.append(s + ":")
    def raw(self, s): self.l.append(s)
    def text(self): return "\n".join(self.l) + "\n"

def emit_mfma(e, m, n, par, zeroC=False):
    if m[0] == "QK":
        _, t, kt, c = m
        C = rNEGM(t) if c == 0 else rS(t, kt)
        e(f"v_mfma_f32_16x16x32_bf16 {rS(t, kt)}, {rK(kt, c)}, {rQ(t, c)}, {C}")
    elif m[0] == "L":
        t = m[1]
        e(f"v_mfma_f32_16x16x32_bf16 {rL(t)}, {ar(A_ONES, 4)}, {rP(par, n, t)}, {rL(t)}")
    else:
        _, t, dt = m
        e(f"v_mfma_f32_16x16x32_bf16 {rO(t, dt)}, {rV(dt)}, {rP(par, n, t)}, {rO(t, dt)}")

def emit_iter(e, n, o, par, mode, lds_q, last_in_pass=False):
    mf, gaps, cap = build_schedule(n, o)
    G = len(mf)
    newpar = par ^ 1
    slot_imm = par * 8192
    def do_wait(need):
        pos = [i for i, tg in enumerate(lds_q) if tg in need]
        if not pos: return
        last = max(pos)
        N = len(lds_q) - 1 - last
        assert N <= 15
        e(f"s_waitcnt lgkmcnt({N})")
        del lds_q[: last + 1]
    for g, m in enumerate(mf):
        isA = m[0] == "QK"
        if (isA and mode in ("full", "A")) or ((not isA) and mode in ("full", "B")):
            emit_mfma(e, m, n, par)
        for x in gaps[g]:
            k = x["k"]
            if k == "exp":
                if x["old"]:
                    if mode == "A": continue
                else:
                    if mode == "B": continue
                rr = rS(x["t"], x["kt"], x["r"])
                e(f"v_exp_f32 {rr}, {rr}")
            elif k == "cvt":
                if x["old"]:
                    if mode == "A": continue
                    pb = par
                else:
                    if mode == "B": continue
                    pb = newpar
                t, j = x["t"], x["j"]
                kt, jj = j >> 1, j & 1
                if mode != "full": e("s_nop 0")
                e(f"v_cvt_pk_bf16_f32 {rP(pb, n, t, j)}, {rS(t, kt, 2*jj)}, {rS(t, kt, 2*jj+1)}")
            elif k == "dsV":
                if mode == "A": continue
                dt, h = x["dt"], x["h"]
                e(f"ds_read_b64_tr_b16 {rV(dt, h)}, {vr(V_AV + (dt & 3))} offset:{slot_imm + h * 4096 + (dt >> 2) * 1024}")
                lds_q.append(("V", dt, h))
            elif k == "dsK":
                if mode == "B": continue
                kt, c = x["kt"], x["c"]
                e(f"ds_read_b128 {rK(kt, c)}, {vr(V_AK + (c & 1))} offset:{slot_imm + kt * 4096 + (c >> 1) * 1024}")
                lds_q.append(("K", kt, c))
            elif k == "wait":
                if x.get("kwait"):
                    if mode == "B": continue
                else:
                    if mode == "A": continue
                do_wait(x["need"])
            elif k == "m0":
                if mode == "A": continue
                if par == 1: e(f"s_xor_b32 m0, m0, 0x2000")
                else: e(f"s_xor_b32 m0, m0, {sr(S_D6)}")
            elif k == "dma":
                if mode == "A": continue
                b = x["b"]
                e(f"buffer_load_dwordx4 {vr(V_DMA + b)}, {sr(S_KVSRD, 4)}, {sr(S_OFF)} offen offset:{b * 1024} lds")
            elif k == "soff":
                if mode == "A": continue
                e(f"s_add_u32 {sr(S_OFF)}, {sr(S_OFF)}, 8192")
            elif k == "vmwait":
                if mode == "A": continue
                e(f"s_waitcnt vmcnt(20)")
            elif k == "bar":
                if mode == "A": continue
                e("s_barrier")
            elif k == "vxor":
                if par == 1 and mode != "B": e(f"v_xor_b32 {vr(x['reg'])}, {sr(S_D4)}, {vr(x['reg'])}")
            elif k == "sxor4":
                if par == 1 and mode != "B": e(f"s_xor_b32 {sr(S_D4)}, {sr(S_D4)}, 0x8000")
            elif k == "sxor6":
                if par == 0 and mode != "A": e(f"s_xor_b32 {sr(S_D6)}, {sr(S_D6)}, 0x8000")
            elif k == "ctl":
                pass
            else:
                raise ValueError(k)

def stamp(e, o, i):
    if not o.diag: return
    e(f"s_memrealtime {sr(S_STAMP + 2 * i, 2)}")

def emit_prime(e):
    e(f"s_mov_b32 {sr(S_OFF)}, {sr(S_OFF0)}")
    e(f"s_mov_b32 m0, {sr(S_M0BASE)}")
    e(f"s_cmp_lt_u32 {sr(S_W)}, 2")
    e(f"s_cbranch_scc1 L_prime_k_%=")
    e(f"s_add_u32 m0, m0, 16384")
    e(f"s_mov_b32 {sr(S_T0)}, 6")
    e(f"s_branch L_prime_go_%=")
    e.label("L_prime_k_%=")
    e(f"s_mov_b32 {sr(S_T0)}, 8")
    e.label("L_prime_go_%=")
    for b in range(4):
        e(f"buffer_load_dwordx4 {vr(V_DMA + b)}, {sr(S_KVSRD, 4)}, {sr(S_OFF)} offen offset:{b * 1024} lds")
    e(f"s_add_u32 {sr(S_OFF)}, {sr(S_OFF)}, 8192")
    e(f"s_sub_u32 {sr(S_T0)}, {sr(S_T0)}, 1")
    e(f"s_cmp_eq_u32 {sr(S_T0)}, 0")
    e(f"s_cbranch_scc1 L_prime_done_%=")
    e(f"s_add_u32 m0, m0, 8192")
    e(f"s_branch L_prime_go_%=")
    e.label("L_prime_done_%=")

_uid = [0]
def uniq(e, start):
    _uid[0] += 1
    for i in range(start, len(e.l)): e.l[i] = e.l[i].replace("%=", str(_uid[0]))

def emit_qload(e, n):
    for t in range(n):
        if t == 0: e(f"s_mov_b32 {sr(S_T1)}, {sr(S_QO)}")
        else: e(f"s_add_u32 {sr(S_T1)}, {sr(S_T1)}, 4096")
        for c in range(4):
            b = V_O + t * 16 + c * 4
            e(f"buffer_load_dwordx4 {vr(b, 4)}, {vr(V_QOFF)}, {sr(S_QSRD, 4)}, {sr(S_T1)} offen offset:{c * 64}")

def emit_qscale(e, n):
    for i in range(16 * n):
        src = V_O + i
        t0 = V_TMP + (i % 4) * 2
        e(f"v_lshlrev_b32 {vr(t0)}, 16, {vr(src)}")
        e(f"v_and_b32 {vr(t0 + 1)}, 0xffff0000, {vr(src)}")
        e(f"v_mul_f32 {vr(t0)}, {sr(S_SCALE)}, {vr(t0)}")
        e(f"v_mul_f32 {vr(t0 + 1)}, {sr(S_SCALE)}, {vr(t0 + 1)}")
        e(f"v_cvt_pk_bf16_f32 {vr(t0)}, {vr(t0)}, {vr(t0 + 1)}")
        e(f"v_accvgpr_write_b32 {ar(A_Q + i)}, {vr(t0)}")

def emit_zero(e, n):
    for t in range(n):
        for i in range(32):
            if t < 4: e(f"v_mov_b32 {vr(V_O + t * 32 + i)}, 0")
            else: e(f"v_accvgpr_write_b32 {ar(A_O4 + i)}, 0")
        for i in range(4): e(f"v_accvgpr_write_b32 {ar(A_L + 4 * t + i)}, 0")

def emit_kread_all(e, slot_imm):
    for kt in range(2):
        for c in range(4):
            e(f"ds_read_b128 {rK(kt, c)}, {vr(V_AK + (c & 1))} offset:{slot_imm + kt * 4096 + (c >> 1) * 1024}")

def emit_crosslane_max(e, x, y):
    e(f"v_mov_b32 {vr(y)}, {vr(x)}")
    e("s_nop 1")
    e(f"v_permlane32_swap_b32 {vr(x)}, {vr(y)}")
    e("s_nop 1")
    e(f"v_max_f32 {vr(x)}, {vr(x)}, {vr(y)}")
    e(f"v_mov_b32 {vr(y)}, {vr(x)}")
    e("s_nop 1")
    e(f"v_permlane16_swap_b32 {vr(x)}, {vr(y)}")
    e("s_nop 1")
    e(f"v_max_f32 {vr(x)}, {vr(x)}, {vr(y)}")

def emit_mpass(e, n):
    for t in range(n):
        for c in range(4):
            C = "0" if c == 0 else rS(t, 0)
            e(f"v_mfma_f32_16x16x32_bf16 {rS(t, 0)}, {rK(0, c)}, {rQ(t, c)}, {C}")
    e("s_nop 7"); e("s_nop 1")
    for t in range(n):
        x = V_TMP + 8; y = V_TMP + 9
        e(f"v_max3_f32 {vr(x)}, {rS(t, 0, 0)}, {rS(t, 0, 1)}, {rS(t, 0, 2)}")
        e(f"v_max_f32 {vr(x)}, {vr(x)}, {rS(t, 0, 3)}")
        emit_crosslane_max(e, x, y)
        for i in range(4): e(f"v_sub_f32 {vr(V_NEGM + 4 * t + i)}, 0, {vr(x)}")
    e("s_nop 1")

def emit_epilogue(e, n, o):
    e("s_nop 7"); e("s_nop 7")
    e(f"s_mov_b32 {sr(S_T1)}, {sr(S_QO)}")
    R = V_TMP + 10
    for t in range(n):
        e(f"v_accvgpr_read_b32 {vr(R)}, {ar(A_L + 4 * t)}")
        e("s_nop 0")
        e(f"v_rcp_f32 {vr(R)}, {vr(R)}")
        if t > 0: e(f"s_add_u32 {sr(S_T1)}, {sr(S_T1)}, 4096")
        else: e("s_nop 0")
        for dp in range(4):
            B = V_S + ((t * 4 + dp) % 4) * 4
            T = V_TMP + (dp % 2) * 4
            vals = []
            for half in range(2):
                dt = 2 * dp + half
                for r in range(4):
                    if t < 4: e(f"v_mul_f32 {vr(T + r)}, {rO(t, dt, r)}, {vr(R)}")
                    else:
                        e(f"v_accvgpr_read_b32 {vr(T + r)}, {rO(t, dt, r)}")
                if t >= 4:
                    for r in range(4): e(f"v_mul_f32 {vr(T + r)}, {vr(T + r)}, {vr(R)}")
                e(f"v_cvt_pk_bf16_f32 {vr(B + 2 * half)}, {vr(T)}, {vr(T + 1)}")
                e(f"v_cvt_pk_bf16_f32 {vr(B + 2 * half + 1)}, {vr(T + 2)}, {vr(T + 3)}")
            e("s_nop 1")
            e(f"v_permlane16_swap_b32 {vr(B)}, {vr(B + 2)}")
            e(f"v_permlane16_swap_b32 {vr(B + 1)}, {vr(B + 3)}")
            e(f"buffer_store_dwordx4 {vr(B, 4)}, {vr(V_OOFF)}, {sr(S_OSRD, 4)}, {sr(S_T1)} offen offset:{dp * 64}")

def emit_block(e, n, o, name, other):
    e.label(f"L_block_{name}")
    rowbase = 0 if n == 5 else 320
    e(f"s_mul_i32 {sr(S_QO)}, {sr(S_HEAD)}, {HEAD_Q}")
    e(f"s_mul_i32 {sr(S_T0)}, {sr(S_W)}, {16 * n * 256}")
    e(f"s_add_u32 {sr(S_QO)}, {sr(S_QO)}, {sr(S_T0)}")
    e(f"s_add_u32 {sr(S_QO)}, {sr(S_QO)}, {rowbase * 256}")
    emit_qload(e, n)
    st = len(e.l)
    e(f"s_cmp_lg_u32 {sr(S_BLK)}, 0")
    e(f"s_cbranch_scc1 L_noprime_%=")
    emit_prime(e)
    e.label("L_noprime_%=")
    uniq(e, st)
    sb = 1 if n == 5 else 7
    stamp(e, o, sb)
    st = len(e.l)
    e(f"s_cmp_lg_u32 {sr(S_BLK)}, 0")
    e(f"s_cbranch_scc1 L_w0_%=")
    e(f"s_waitcnt vmcnt(24)")
    e(f"s_cmp_lt_u32 {sr(S_W)}, 2")
    e(f"s_cbranch_scc0 L_w1_%=")
    e(f"s_waitcnt vmcnt(32)")
    e(f"s_branch L_w1_%=")
    e.label("L_w0_%=")
    e(f"s_waitcnt vmcnt(0)")
    e.label("L_w1_%=")
    uniq(e, st)
    emit_qscale(e, n)
    emit_zero(e, n)
    e(f"s_waitcnt vmcnt(20)")
    e("s_barrier")
    stamp(e, o, sb + 1)
    emit_kread_all(e, 0)
    e("s_waitcnt lgkmcnt(0)")
    emit_mpass(e, n)
    q = []
    emit_iter(e, n, o, 1, "A", q)
    assert not q, q
    stamp(e, o, sb + 2)
    e(f"s_add_u32 {sr(S_CNT)}, {sr(S_OFF)}, {31 * 8192}")
    e(".p2align 6" if False else "s_nop 0")
    e.label(f"L_loop_{name}")
    emit_iter(e, n, o, 0, "full", q); assert not q
    e(f"s_cmp_eq_u32 {sr(S_OFF)}, {sr(S_CNT)}")
    e(f"s_cbranch_scc1 L_last_{name}")
    emit_iter(e, n, o, 1, "full", q); assert not q
    e(f"s_branch L_loop_{name}")
    e.label(f"L_last_{name}")
    emit_iter(e, n, o, 1, "B", q); assert not q
    stamp(e, o, sb + 3)
    emit_epilogue(e, n, o)
    stamp(e, o, sb + 4)
    e(f"s_cmp_lg_u32 {sr(S_BLK)}, 0")
    e(f"s_cbranch_scc1 L_done")
    e(f"s_mov_b32 {sr(S_BLK)}, 1")
    e(f"s_add_u32 {sr(S_HEAD)}, {sr(S_HEAD)}, 1")
    e(f"s_branch L_block_{other}")

def gen(o):
    e = Em()
    e.raw(f"; @launch grid=(256,1,1) block=(256,1,1) lds={o.lds}")
    e.raw('.amdgcn_target "amdgcn-amd-amdhsa--gfx950"')
    e.raw(".text")
    e.raw(f".globl {KNAME}")
    e.raw(".p2align 8")
    e.raw(f".type {KNAME},@function")
    e.label(KNAME)
    e("s_cmp_ge_u32 s2, 256")
    e("s_cbranch_scc1 L_exit")
    e("s_load_dwordx4 s[4:7], s[0:1], 0")
    e("s_load_dwordx4 s[8:11], s[0:1], 16")
    if o.diag:
        e("s_load_dwordx2 s[46:47], s[0:1], 40")
    stamp(e, o, 0)
    if o.diag: e(f"s_memtime {sr(S_STAMP + 28, 2)}")
    e(f"v_lshrrev_b32 {vr(V_T0)}, 6, v0")
    e(f"v_and_b32 v0, 63, v0")
    e("s_nop 0")
    e(f"v_readfirstlane_b32 {sr(S_W)}, {vr(V_T0)}")
    e(f"s_and_b32 {sr(S_T0)}, s2, 7")
    e(f"s_lshr_b32 {sr(S_T1)}, s2, 3")
    e(f"s_and_b32 {sr(S_ROLE)}, {sr(S_T1)}, 1")
    if o.share:
        e(f"s_lshr_b32 {sr(S_T1)}, {sr(S_T1)}, 1")
        e(f"s_lshl_b32 {sr(S_T1)}, {sr(S_T1)}, 1")
        e(f"s_lshl_b32 {sr(S_T0)}, {sr(S_T0)}, 5")
        e(f"s_add_u32 {sr(S_HEAD)}, {sr(S_T0)}, {sr(S_T1)}")
    else:
        raise NotImplementedError
    e(f"s_mov_b32 {sr(S_BLK)}, 0")
    k = V_T0; g = V_T1; t = V_T2
    e(f"v_and_b32 {vr(k)}, 15, v0")
    e(f"v_lshrrev_b32 {vr(g)}, 4, v0")
    e(f"v_lshlrev_b32 {vr(V_QOFF)}, 8, {vr(k)}")
    e(f"v_lshl_add_u32 {vr(V_QOFF)}, {vr(g)}, 4, {vr(V_QOFF)}")
    e(f"v_lshlrev_b32 {vr(V_OOFF)}, 8, {vr(k)}")
    e(f"v_and_b32 {vr(t)}, 1, {vr(g)}")
    e(f"v_lshl_add_u32 {vr(V_OOFF)}, {vr(t)}, 5, {vr(V_OOFF)}")
    e(f"v_lshrrev_b32 {vr(t)}, 1, {vr(g)}")
    e(f"v_lshl_add_u32 {vr(V_OOFF)}, {vr(t)}, 4, {vr(V_OOFF)}")
    T = V_TMP
    e(f"v_lshrrev_b32 {vr(T)}, 3, {vr(k)}")
    e(f"v_lshlrev_b32 {vr(T)}, 11, {vr(T)}")
    e(f"v_and_b32 {vr(T + 1)}, 7, {vr(k)}")
    e(f"v_lshl_add_u32 {vr(T)}, {vr(T + 1)}, 7, {vr(T)}")
    e(f"v_bfe_u32 {vr(T + 1)}, {vr(k)}, 1, 3")
    for b in range(2):
        e(f"v_add_u32 {vr(T + 2)}, {4 * b}, {vr(g)}")
        e(f"v_xor_b32 {vr(T + 2)}, {vr(T + 2)}, {vr(T + 1)}")
        e(f"v_lshl_add_u32 {vr(V_AK + b)}, {vr(T + 2)}, 4, {vr(T)}")
    e(f"v_bfe_u32 {vr(T)}, v0, 2, 2")
    e(f"v_and_b32 {vr(T + 1)}, 1, {vr(g)}")
    e(f"v_lshl_add_u32 {vr(T)}, {vr(T + 1)}, 2, {vr(T)}")
    e(f"v_lshrrev_b32 {vr(T + 1)}, 1, {vr(g)}")
    e(f"v_lshlrev_b32 {vr(T + 1)}, 11, {vr(T + 1)}")
    e(f"v_lshl_add_u32 {vr(T + 1)}, {vr(T)}, 7, {vr(T + 1)}")
    e(f"v_and_b32 {vr(T + 2)}, 1, v0")
    e(f"v_lshl_add_u32 {vr(T + 1)}, {vr(T + 2)}, 3, {vr(T + 1)}")
    e(f"v_add_u32 {vr(T + 1)}, 0x10000, {vr(T + 1)}")
    e(f"v_bfe_u32 {vr(T + 2)}, {vr(T)}, 1, 2")
    e(f"v_lshlrev_b32 {vr(T + 2)}, 1, {vr(T + 2)}")
    e(f"v_bfe_u32 {vr(T + 3)}, v0, 1, 1")
    for b in range(4):
        e(f"v_add_u32 {vr(T + 4)}, {2 * b}, {vr(T + 3)}")
        e(f"v_xor_b32 {vr(T + 4)}, {vr(T + 4)}, {vr(T + 2)}")
        e(f"v_lshl_add_u32 {vr(V_AV + b)}, {vr(T + 4)}, 4, {vr(T + 1)}")
    e(f"v_lshrrev_b32 {vr(T)}, 3, v0")
    e(f"v_and_b32 {vr(T + 1)}, 7, v0")
    e(f"v_lshrrev_b32 {vr(T + 2)}, 1, {vr(T)}")
    e(f"v_lshlrev_b32 {vr(T + 3)}, 1, {vr(T + 2)}")
    e(f"s_cmp_lt_u32 {sr(S_W)}, 2")
    e(f"s_cselect_b64 vcc, -1, 0")
    for a1 in range(2):
        e(f"v_add_u32 {vr(T + 4)}, {4 * a1}, {vr(T + 2)}")
        e(f"v_cndmask_b32 {vr(T + 4)}, {vr(T + 3)}, {vr(T + 4)}, vcc")
        e(f"v_xor_b32 {vr(T + 4)}, {vr(T + 4)}, {vr(T + 1)}")
        e(f"v_lshlrev_b32 {vr(T + 4)}, 4, {vr(T + 4)}")
        e(f"v_lshl_add_u32 {vr(T + 4)}, {vr(T)}, 8, {vr(T + 4)}")
        e(f"v_add_u32 {vr(V_DMA + 2 * a1)}, {BIAS}, {vr(T + 4)}")
        e(f"v_mov_b32 {vr(V_DMA + 2 * a1 + 1)}, {vr(T + 4)}")
    e(f"s_mov_b32 {sr(S_SCALE)}, 0x{o.scale_bits:08x}")
    e(f"v_mov_b32 {vr(T)}, 0x3f803f80")
    for i in range(4): e(f"v_accvgpr_write_b32 {ar(A_ONES + i)}, {vr(T)}")
    e(f"s_mov_b32 {sr(S_D4)}, 0x4000")
    e(f"s_mov_b32 {sr(S_D6)}, 0xe000")
    e("s_waitcnt lgkmcnt(0)")
    e(f"s_mov_b32 s12, s4"); e(f"s_mov_b32 s13, s5"); e(f"s_mov_b32 s14, {Q_BYTES}"); e(f"s_mov_b32 s15, 0x00020000")
    e(f"s_mov_b32 s20, s10"); e(f"s_mov_b32 s21, s11"); e(f"s_mov_b32 s22, {Q_BYTES}"); e(f"s_mov_b32 s23, 0x00020000")
    e(f"s_cmp_lt_u32 {sr(S_W)}, 2")
    e(f"s_cselect_b32 s16, s6, s8")
    e(f"s_cselect_b32 s17, s7, s9")
    e(f"s_sub_u32 s16, s16, {BIAS}")
    e(f"s_subb_u32 s17, s17, 0")
    e(f"s_add_u32 {sr(S_T0)}, {sr(S_HEAD)}, 2")
    e(f"s_mul_i32 s18, {sr(S_T0)}, {HEAD_KV}")
    e(f"s_add_u32 s18, s18, {BIAS}")
    e(f"s_mov_b32 s19, 0x00020000")
    e(f"s_and_b32 {sr(S_T0)}, {sr(S_W)}, 1")
    e(f"s_lshl_b32 {sr(S_T0)}, {sr(S_T0)}, 12")
    e(f"s_mul_i32 {sr(S_OFF0)}, {sr(S_HEAD)}, {HEAD_KV}")
    e(f"s_add_u32 {sr(S_OFF0)}, {sr(S_OFF0)}, {sr(S_T0)}")
    e(f"s_lshr_b32 {sr(S_T1)}, {sr(S_W)}, 1")
    e(f"s_lshl_b32 {sr(S_T1)}, {sr(S_T1)}, 16")
    e(f"s_add_u32 {sr(S_M0BASE)}, {sr(S_T0)}, {sr(S_T1)}")
    e(f"s_cmp_eq_u32 {sr(S_ROLE)}, 0")
    e("s_cbranch_scc0 L_block_n4")
    emit_block(e, 5, o, "n5", "n4")
    emit_block(e, 4, o, "n4", "n5")
    e.label("L_done")
    if o.diag:
        e("s_waitcnt vmcnt(0) lgkmcnt(0)")
        stamp(e, o, 13)
        e(f"s_memtime {sr(S_STAMP + 30, 2)}")
        e("s_waitcnt lgkmcnt(0)")
        e(f"s_lshl_b32 {sr(S_T0)}, s2, 2")
        e(f"s_add_u32 {sr(S_T0)}, {sr(S_T0)}, {sr(S_W)}")
        e(f"s_lshl_b32 {sr(S_T0)}, {sr(S_T0)}, 7")
        e("s_mov_b32 s4, s46"); e("s_mov_b32 s5, s47"); e("s_mov_b32 s6, 0x100000"); e("s_mov_b32 s7, 0x00020000")
        for i in range(32): e(f"v_writelane_b32 v1, {sr(S_STAMP + i)}, {i}") if i else e(f"v_mov_b32 v1, {sr(S_STAMP)}")
        e(f"v_lshlrev_b32 v2, 2, v0")
        e(f"v_add_u32 v2, {sr(S_T0)}, v2")
        e("v_cmp_gt_u32 vcc, 32, v0")
        e("s_and_saveexec_b64 s[38:39], vcc")
        e("buffer_store_dword v1, v2, s[4:7], 0 offen")
        e("s_waitcnt vmcnt(0)")
    e.label("L_exit")
    e("s_endpgm")
    e.raw('.section .rodata,"a"')
    e.raw(".p2align 6")
    e.raw(f".amdhsa_kernel {KNAME}")
    e.raw("  .amdhsa_next_free_vgpr 512")
    e.raw("  .amdhsa_next_free_sgpr 96")
    e.raw("  .amdhsa_accum_offset 256")
    e.raw("  .amdhsa_group_segment_fixed_size 0")
    e.raw("  .amdhsa_kernarg_size 48")
    e.raw("  .amdhsa_user_sgpr_count 2")
    e.raw("  .amdhsa_user_sgpr_kernarg_segment_ptr 1")
    e.raw("  .amdhsa_system_sgpr_workgroup_id_x 1")
    e.raw(".end_amdhsa_kernel")
    return e.text()

def default_opt():
    import struct, math
    o = Opt()
    o.qk_order = 't'; o.pv_order = 'dt'; o.lat_exp = 3; o.ephase = 0; o.exp_asap = False
    o.dma_start = 2; o.dma_step = 0; o.bar_back = 4; o.v_start = 0; o.v_step = 2; o.lat_ds = 8; o.k_start = 2; o.k_step = 2
    o.vwait_groups = [[0, 1, 2, 3], [4, 5, 6, 7]]
    o.diag = False; o.diag_cyc = False; o.share = True; o.lds = 131072
    o.scale_bits = struct.unpack("<I", struct.pack("<f", (128 ** -0.5) * math.log2(math.e)))[0]
    return o

if __name__ == "__main__":
    ap = argparse.ArgumentParser()
    ap.add_argument("out")
    ap.add_argument("--diag", action="store_true")
    ap.add_argument("--cyc", action="store_true")
    ap.add_argument("--set", action="append", default=[])
    a = ap.parse_args()
    o = default_opt()
    o.diag = a.diag; o.diag_cyc = a.cyc
    for kv in a.set:
        k, v = kv.split("=")
        setattr(o, k, eval(v))
    open(a.out, "w").write(gen(o))
```

```python
import sys, argparse

KNAME = "standalone__mha_softmax__near_ridge_kernel"
NHEAD = 256; SQ = 576; SK = 1024; D = 128
Q_BYTES = NHEAD * SQ * D * 2
HEAD_KV = SK * D * 2
HEAD_Q = SQ * D * 2
BIAS = 896
VREG = 32768
STG0 = 65536
STGW = 21760
DUMMY = STG0 + 4 * STGW
LDS_BYTES = DUMMY + 3072
OPITCH = 4352

S_QSRD = 12; S_KVSRD = 16; S_OSRD = 20
S_W = 24; S_OFF = 25; S_CNT = 26; S_END = 27; S_BLK = 28; S_HEAD = 29; S_QO = 30; S_QON = 31
S_M0R = 32; S_STG = 33; S_SSRC = 34; S_SDST = 35; S_DS = 36; S_DD = 37; S_XS = 38; S_XD = 39
S_T0 = 40; S_T1 = 41; S_T2 = 42; S_T3 = 43; S_SCALE2 = 44; S_OFF0 = 46; S_M0P = 47
S_STAMP = 48
S_WS = 80
S_ROLE = 82; S_OOB = 83; S_THR = 84; S_HEADN = 85; S_SAVE = 86
OOB = 0x7ff00000
V_T0 = 1; V_T1 = 2; V_T2 = 3
V_AK = 4
V_AV = 6
V_DMA = 10
V_LANE16 = 14
V_OW = 15
V_NEGM = 16
V_S = 36
V_P = 76
V_TMP = 116
V_SD = 116
V_SA = 120
V_QD = 122
V_X = 124
V_O = 128
A_Q = 0; A_K = 80; A_V = 112; A_L = 144; A_ONES = 164; A_O4 = 168

def vr(b, n=1): return f"v{b}" if n == 1 else f"v[{b}:{b+n-1}]"
def ar(b, n=1): return f"a{b}" if n == 1 else f"a[{b}:{b+n-1}]"
def sr(b, n=1): return f"s{b}" if n == 1 else f"s[{b}:{b+n-1}]"
def rS(t, kt, r=None):
    b = V_S + t * 8 + kt * 4
    return vr(b, 4) if r is None else vr(b + r)
def rP(par, t, j=None):
    b = V_P + par * 20 + t * 4
    return vr(b, 4) if j is None else vr(b + j)
def rNEGM(t): return vr(V_NEGM + 4 * t, 4)
def rO(t, dt, r=None):
    if t < 4:
        b = V_O + t * 32 + dt * 4
        return vr(b, 4) if r is None else vr(b + r)
    b = A_O4 + dt * 4
    return ar(b, 4) if r is None else ar(b + r)
def rQ(t, c): return ar(A_Q + t * 16 + c * 4, 4)
def rK(kt, c): return ar(A_K + (kt * 4 + c) * 4, 4)
def rV(dt, h=None):
    b = A_V + dt * 4
    return ar(b, 4) if h is None else ar(b + 2 * h, 2)
def rL(t): return ar(A_L + 4 * t, 4)

class Opt: pass
OPT = None

class Em:
    def __init__(self): self.l = []
    def __call__(self, s): self.l.append("  " + s)
    def label(self, s): self.l.append(s + ":")
    def raw(self, s): self.l.append(s)
    def text(self): return "\n".join(self.l) + "\n"

def mfma_list(n, o):
    L = []
    for t in range(n):
        for kt in range(2):
            for c in range(4): L.append(("QK", t, kt, c))
    for t in range(n): L.append(("L", t))
    if o.pv_order == "dt":
        for dt in range(8):
            for t in range(n): L.append(("PV", t, dt))
    else:
        for t in range(n):
            for dt in range(8): L.append(("PV", t, dt))
    return L

_sched_cache = {}
def build_schedule(n, side, o):
    key = (n, side)
    if key in _sched_cache: return _sched_cache[key]
    mf = mfma_list(n, o)
    G = len(mf)
    idx = {m: i for i, m in enumerate(mf)}
    nE = 8 * n
    isE = [False] * G
    for k in range(nE): isE[(int(k * G / nE) + o.ephase) % G] = True
    assert sum(isE) == nE and not isE[G - 1]
    gaps = [[] for _ in range(G)]
    cap = [[0 if isE[g] else 2 for g in range(G)] for _ in range(2)]
    order = sorted((idx[("QK", t, kt, 3)] + o.lat_exp, t, kt) for t in range(n) for kt in range(2))
    pos = order[0][0] - 1
    exp_pos = {}
    for (rdy, t, kt) in order:
        for r in range(4):
            pos += 1
            while not (isE[pos % G] and not gaps[pos % G]): pos += 1
            assert pos >= rdy
            gaps[pos % G].append(dict(k="exp", t=t, kt=kt, r=r, old=(pos >= G)))
            exp_pos[(t, kt, r)] = pos
            assert pos < G + idx[("QK", t, kt, 0)]
    VALU = ("cvt", "vxor", "vadd")
    DS = ("dsK", "dsV", "dsS")
    def place(item, lo, hi, alone=False, rev=False):
        on = item.get("on")
        pars = (0, 1) if on is None else (on,)
        rng = range(lo, hi + 1) if not rev else range(hi, lo - 1, -1)
        for p in rng:
            g = p % G
            if isE[g]: continue
            if alone:
                if all(cap[q][g] == 2 for q in pars) and not gaps[g]:
                    for q in pars: cap[q][g] = 0
                    gaps[g].append(item); item["pos"] = p; return p
                continue
            if any(cap[q][g] == 0 for q in pars): continue
            if any(x["k"] in ("dma", "sdma", "sst") for x in gaps[g]): continue
            for q in pars: cap[q][g] -= 1
            if item["k"] in DS and any(x["k"] in VALU for x in gaps[g]): gaps[g].insert(0, item)
            elif item["k"] not in VALU and any(x["k"] in VALU for x in gaps[g]) and item["k"] != "kwait": gaps[g].insert(0, item)
            else: gaps[g].append(item)
            item["pos"] = p
            return p
        raise RuntimeError(f"n={n} side={side}: cannot place {item} in [{lo},{hi}]")
    for q in range(2): cap[q][G - 1] = 0
    gaps[G - 1].append(dict(k="ctl"))
    for (rdy, t, kt) in order:
        for jj in range(2):
            p = exp_pos[(t, kt, 2 * jj + 1)]
            it = dict(k="cvt", t=t, j=kt * 2 + jj)
            pp = place(it, p + 1, p + 8)
            it["old"] = pp >= G
            assert pp < G + idx[("QK", t, kt, 0)]
            first_use = min(i for i, m in enumerate(mf) if m[0] in ("L", "PV") and m[1] == t)
            assert pp + 1 < G + first_use
    firstV = {dt: min(i for i, m in enumerate(mf) if m[0] == "PV" and m[2] == dt) for dt in range(8)}
    firstPV = min(firstV.values())
    mpos = None
    for p in range(firstPV - 1 - o.m_back, 8 * n - 8, -1):
        if not isE[p] and cap[0][p] == 2 and cap[1][p] == 2:
            cap[0][p] = cap[1][p] = 0; gaps[p] += [dict(k="mwait"), dict(k="bar")]; mpos = p; break
    assert mpos is not None
    p = o.v_start
    if side == "o": place(dict(k="dsS"), p, mpos - o.lat_ds)
    for dt in range(8):
        for h in range(2):
            pp = place(dict(k="dsV", dt=dt, h=h), p, mpos - o.lat_ds)
            p = max(p, pp)
    lastdsV = p
    lastK = {(kt, c): max(i for i, m in enumerate(mf) if m[0] == "QK" and m[2] == kt and m[3] == c) for kt in range(2) for c in range(4)}
    pm0 = place(dict(k="m0"), mpos + 1, G - 2)
    p = pm0 + 1
    kp = mpos + 1
    kl = [(kt, c) for kt in range(2) for c in range(4)]
    lastdma = None
    for b in range(4):
        lastdma = place(dict(k="dma", b=b), p, G - 2, alone=True)
        p = lastdma + o.dma_step
        for _ in range(2):
            kt, c = kl.pop(0)
            kp = place(dict(k="dsK", kt=kt, c=c), max(kp, lastK[(kt, c)]), G - 2 - o.lat_ds)
    lastdsK = kp
    place(dict(k="kwait"), lastdsK + o.lat_ds, G - 2, rev=True)
    place(dict(k="soff"), lastdma + 1, G - 2)
    if side == "q":
        place(dict(k="m0tog", on=0), lastdma + 1, G - 2)
        pm = place(dict(k="sm0"), lastdma + 1, G - 3)
        ps = place(dict(k="sdma"), pm + 1, G - 2, alone=True)
        q0 = place(dict(k="supd", i=0, on=1), 0, mpos - 1)
        q1 = place(dict(k="supd", i=1, on=1), 0, mpos - 1)
        place(dict(k="supd", i=2, on=1), q0 + 1, G - 2)
        place(dict(k="supd", i=3, on=1), q1 + 1, G - 2)
    elif side == "o":
        ps = place(dict(k="sst"), mpos + 1, G - 2, alone=True)
        place(dict(k="supd", i=0, on=0), ps + 1, G - 2)
        place(dict(k="vadd", on=0), gaps_pos_dsS(gaps) + 1, G - 2)
    for i in range(4): place(dict(k="vxor", reg=V_AV + i, on=0), lastdsV + 1, G - 2)
    for i in range(2): place(dict(k="vxor", reg=V_AK + i, on=1), lastdsK + 1, G - 2)
    _sched_cache[key] = (mf, gaps, cap)
    return mf, gaps, cap

def gaps_pos_dsS(gaps):
    return [x["pos"] for g in gaps for x in g if x["k"] == "dsS"][0]

def describe(n, side, o):
    mf, gaps, cap = build_schedule(n, side, o)
    for g, m in enumerate(mf):
        print(g, m, [(x["k"], x.get("t", ""), x.get("dt", x.get("kt", x.get("j", x.get("b", x.get("i", "")))))) for x in gaps[g]], "free", cap[0][g], cap[1][g])
    print("free slots:", sum(cap[0]), sum(cap[1]))

def mfma_str(m, par, zeroC=False):
    if m[0] == "QK":
        _, t, kt, c = m
        C = rNEGM(t) if c == 0 else rS(t, kt)
        return f"v_mfma_f32_16x16x32_bf16 {rS(t, kt)}, {rK(kt, c)}, {rQ(t, c)}, {C}"
    if m[0] == "L":
        t = m[1]
        return f"v_mfma_f32_16x16x32_bf16 {rL(t)}, {ar(A_ONES, 4)}, {rP(par, t)}, {'0' if zeroC else rL(t)}"
    _, t, dt = m
    return f"v_mfma_f32_16x16x32_bf16 {rO(t, dt)}, {rV(dt)}, {rP(par, t)}, {'0' if zeroC else rO(t, dt)}"

def dma_str(b):
    return f"buffer_load_dwordx4 {vr(V_DMA + b)}, {sr(S_KVSRD, 4)}, {sr(S_OFF)} offen offset:{b * 1024} {OPT.kv_pol} lds"

def emit_iter(e, n, side, o, par, mode, zeroC=False, vmn=None, filler=None, first=False):
    mf, gaps, cap = build_schedule(n, side, o)
    newpar = par ^ 1
    v_imm = ((par + 1) & 1) * 8192
    k_imm = par * 8192
    nside = 1 if side else 0
    if vmn is None: vmn = 2 * (4 + nside)
    lds_q = []
    def fill(k=1):
        if filler:
            for _ in range(k):
                if filler: e(filler.pop(0))
    for g, m in enumerate(mf):
        isA = m[0] == "QK"
        if isA or mode == "full": e(mfma_str(m, par, zeroC))
        for x in gaps[g]:
            k = x["k"]
            A = mode == "A"
            if k == "exp":
                if x["old"] and A: fill(2); continue
                rr = rS(x["t"], x["kt"], x["r"]); e(f"v_exp_f32 {rr}, {rr}")
            elif k == "cvt":
                if x["old"] and A: fill(); continue
                pb = par if x["old"] else newpar
                t, j = x["t"], x["j"]; kt, jj = j >> 1, j & 1
                if A and g >= 8 * n: e("s_nop 0")
                e(f"v_cvt_pk_bf16_f32 {rP(pb, t, j)}, {rS(t, kt, 2*jj)}, {rS(t, kt, 2*jj+1)}")
            elif k == "dsV":
                if A: fill(); continue
                dt, h = x["dt"], x["h"]
                e(f"ds_read_b64_tr_b16 {rV(dt, h)}, {vr(V_AV + (dt & 3))} offset:{v_imm + h * 4096 + (dt >> 2) * 1024}")
            elif k == "dsS":
                if A or first: fill(); continue
                e(f"ds_read_b128 {vr(V_SD, 4)}, {vr(V_SA)} offset:{0 if par == 1 else 1088}")
            elif k == "dsK":
                kt, c = x["kt"], x["c"]
                e(f"ds_read_b128 {rK(kt, c)}, {vr(V_AK + (c & 1))} offset:{k_imm + kt * 4096 + (c >> 1) * 1024}")
            elif k == "kwait":
                e("s_waitcnt lgkmcnt(0)")
            elif k == "mwait":
                if A: fill(); continue
                e(f"s_waitcnt vmcnt({vmn}) lgkmcnt(0)" if not OPT.x_novm else "s_waitcnt lgkmcnt(0)")
            elif k == "bar":
                if A: fill(); continue
                if not OPT.x_nobar: e("s_barrier")
            elif k == "m0":
                if A: continue
                if side == "q":
                    if par == 0: e(f"s_xor_b32 m0, {sr(S_M0R)}, 0x2000")
                    else: e(f"s_mov_b32 m0, {sr(S_M0R)}")
                else:
                    d = 0x2000 if par == 0 else 0x6000
                    e(f"s_xor_b32 m0, m0, 0x{d:x}")
            elif k == "m0tog":
                if A or par != 0: continue
                e(f"s_xor_b32 {sr(S_M0R)}, {sr(S_M0R)}, 0x4000")
            elif k == "dma":
                if A: fill(2); continue
                if not OPT.x_nodma: e(dma_str(x["b"]))
            elif k == "soff":
                if A: continue
                e(f"s_add_u32 {sr(S_OFF)}, {sr(S_OFF)}, 8192")
            elif k == "sm0":
                if A: continue
                e(f"s_mov_b32 m0, {DUMMY if first else sr(S_SDST)}")
            elif k == "sdma":
                if A: fill(2); continue
                a1 = 0 if par == 1 else 1
                e(f"buffer_load_dwordx4 {vr(V_QD + a1)}, {sr(S_QSRD, 4)}, {sr(S_OOB if first else S_SSRC)} offen offset:{a1 * 2048} {OPT.q_pol} lds")
            elif k == "sst":
                if A: fill(2); continue
                e(f"buffer_store_dwordx4 {vr(V_SD, 4)}, {vr(V_LANE16)}, {sr(S_OSRD, 4)}, {sr(S_OOB if first else S_SSRC)} offen offset:{0 if par == 1 else 1024} {OPT.o_pol}")
            elif k == "supd":
                if A or first or par != x["on"]: continue
                i = x["i"]
                if side == "q":
                    e([f"s_add_u32 {sr(S_SSRC)}, {sr(S_SSRC)}, {sr(S_DS)}", f"s_add_u32 {sr(S_SDST)}, {sr(S_SDST)}, {sr(S_DD)}",
                       f"s_xor_b32 {sr(S_DS)}, {sr(S_DS)}, {sr(S_XS)}", f"s_xor_b32 {sr(S_DD)}, {sr(S_DD)}, {sr(S_XD)}"][i])
                else:
                    e(f"s_add_u32 {sr(S_SSRC)}, {sr(S_SSRC)}, {sr(S_DS)}")
            elif k == "vadd":
                if A or first or par != x["on"]: continue
                e(f"v_add_u32 {vr(V_SA)}, {sr(S_DD)}, {vr(V_SA)}")
            elif k == "vxor":
                if x["on"] != par: continue
                if A and x["reg"] >= V_AV: continue
                e(f"v_xor_b32 {vr(x['reg'])}, 0x4000, {vr(x['reg'])}")
            elif k == "ctl":
                pass
            else:
                raise ValueError(k)

def stamp(e, o, i):
    if not o.diag: return
    if o.diag_cyc: e(f"s_memtime {sr(S_STAMP + 2 * i, 2)}")
    else: e(f"s_memrealtime {sr(S_STAMP + 2 * i, 2)}")

_uid = [0]
def uid():
    _uid[0] += 1
    return _uid[0]

def emit_ring_group(e):
    for b in range(4): e(dma_str(b))
    e(f"s_add_u32 {sr(S_OFF)}, {sr(S_OFF)}, 8192")

def emit_qo(e, n, head_sreg, dst):
    rowbase = 0 if n == 5 else 320
    e(f"s_mul_i32 {sr(dst)}, {sr(head_sreg)}, {HEAD_Q}")
    e(f"s_mul_i32 {sr(S_T0)}, {sr(S_W)}, {16 * n * 256}")
    e(f"s_add_u32 {sr(dst)}, {sr(dst)}, {sr(S_T0)}")
    e(f"s_add_u32 {sr(dst)}, {sr(dst)}, {rowbase * 256}")

def emit_qd_regs(e):
    T = V_X
    e(f"v_lshrrev_b32 {vr(T)}, 3, v0")
    e(f"v_and_b32 {vr(T + 1)}, 7, v0")
    e(f"v_lshrrev_b32 {vr(T + 2)}, 1, {vr(T)}")
    for a1 in range(2):
        e(f"v_add_u32 {vr(T + 3)}, {4 * a1}, {vr(T + 2)}")
        e(f"v_xor_b32 {vr(T + 3)}, {vr(T + 3)}, {vr(T + 1)}")
        e(f"v_lshlrev_b32 {vr(T + 3)}, 4, {vr(T + 3)}")
        e(f"v_lshl_add_u32 {vr(V_QD + a1)}, {vr(T)}, 8, {vr(T + 3)}")

def emit_q_dma_tile(e, t):
    for hh in range(2):
        e(f"s_add_u32 m0, {sr(S_STG)}, {t * 4096 + hh * 1024}")
        e(f"s_add_u32 {sr(S_T2)}, {sr(S_QO)}, {t * 4096 + hh * 128}")
        for a1 in range(2):
            e(f"buffer_load_dwordx4 {vr(V_QD + a1)}, {sr(S_QSRD, 4)}, {sr(S_T2)} offen offset:{a1 * 2048} {OPT.q_pol} lds")

def qscale_tile(t, o, pk, AQ0, AQ1, R):
    reads = [f"ds_read_b128 {vr(R + 4 * c, 4)}, {vr(AQ0 if (c & 1) == 0 else AQ1)} offset:{t * 4096 + (c >> 1) * 1024}" for c in range(4)]
    chains = []
    for i in range(16):
        src = R + i
        t0 = V_TMP + (i % 4) * 2
        ch = [f"v_lshlrev_b32 {vr(t0)}, 16, {vr(src)}", f"v_and_b32 {vr(t0 + 1)}, 0xffff0000, {vr(src)}"]
        if pk: ch.append(f"v_pk_mul_f32 {vr(t0, 2)}, {vr(t0, 2)}, {sr(S_SCALE2, 2)}")
        else: ch += [f"v_mul_f32 {vr(t0)}, {sr(S_SCALE2)}, {vr(t0)}", f"v_mul_f32 {vr(t0 + 1)}, {sr(S_SCALE2)}, {vr(t0 + 1)}"]
        ch += [f"v_cvt_pk_bf16_f32 {vr(t0)}, {vr(t0)}, {vr(t0 + 1)}", f"v_accvgpr_write_b32 {ar(A_Q + t * 16 + i)}, {vr(t0)}"]
        chains.append(ch)
    out = []
    for g in range(4):
        ch = chains[4 * g:4 * g + 4]
        for s in range(len(ch[0])):
            for j in range(4): out.append(ch[j][s])
    return reads, out

def mpass_mfmas(n):
    L = []
    for t in range(n):
        for c in range(4):
            C = "0" if c == 0 else rS(t, 0)
            L.append(f"v_mfma_f32_16x16x32_bf16 {rS(t, 0)}, {rK(0, c)}, {rQ(t, c)}, {C}")
    return L

def mpass_valu(n):
    X = lambda t: V_P + 20 + 2 * t
    L = []
    for t in range(n): L.append(f"v_max3_f32 {vr(X(t))}, {rS(t, 0, 0)}, {rS(t, 0, 1)}, {rS(t, 0, 2)}")
    for t in range(n): L.append(f"v_max_f32 {vr(X(t))}, {vr(X(t))}, {rS(t, 0, 3)}")
    for t in range(n): L.append(f"v_mov_b32 {vr(X(t) + 1)}, {vr(X(t))}")
    L.append("s_nop 1")
    for t in range(n): L.append(f"v_permlane32_swap_b32 {vr(X(t))}, {vr(X(t) + 1)}")
    L.append("s_nop 1")
    for t in range(n): L.append(f"v_max_f32 {vr(X(t))}, {vr(X(t))}, {vr(X(t) + 1)}")
    for t in range(n): L.append(f"v_mov_b32 {vr(X(t) + 1)}, {vr(X(t))}")
    L.append("s_nop 1")
    for t in range(n): L.append(f"v_permlane16_swap_b32 {vr(X(t))}, {vr(X(t) + 1)}")
    L.append("s_nop 1")
    for t in range(n): L.append(f"v_max_f32 {vr(X(t))}, {vr(X(t))}, {vr(X(t) + 1)}")
    for t in range(n):
        for i in range(4): L.append(f"v_sub_f32 {vr(V_NEGM + 4 * t + i)}, 0, {vr(X(t))}")
    L.append("s_nop 1")
    return L

def epi_tile(t, o, to_lds, pk=False):
    L = []
    R = V_X + 3
    L.append(f"v_accvgpr_read_b32 {vr(R)}, {ar(A_L + 4 * t)}")
    if not to_lds: L.append(f"s_add_u32 {sr(S_T1)}, {sr(S_QO)}, {t * 4096}")
    else: L.append("s_nop 0")
    L.append(f"v_rcp_f32 {vr(R)}, {vr(R)}")
    L.append("s_nop 0")
    if pk: L.append(f"v_mov_b32 {vr(R - 1)}, {vr(R)}")
    for dp in range(4):
        B = V_S + ((t * 4 + dp) % 4) * 4
        for half in range(2):
            dt = 2 * dp + half
            T = V_TMP + half * 4
            if t >= 4:
                for r in range(4): L.append(f"v_accvgpr_read_b32 {vr(T + r)}, {rO(t, dt, r)}")
                src = lambda r: vr(T + r); src2 = lambda r: vr(T + r, 2)
            else:
                b0 = V_O + t * 32 + dt * 4
                src = lambda r: vr(b0 + r); src2 = lambda r: vr(b0 + r, 2)
            if pk:
                for r in (0, 2): L.append(f"v_pk_mul_f32 {vr(T + r, 2)}, {src2(r)}, {vr(R - 1, 2)}")
            else:
                for r in range(4): L.append(f"v_mul_f32 {vr(T + r)}, {src(r)}, {vr(R)}")
            L.append(f"v_cvt_pk_bf16_f32 {vr(B + 2 * half)}, {vr(T)}, {vr(T + 1)}")
            L.append(f"v_cvt_pk_bf16_f32 {vr(B + 2 * half + 1)}, {vr(T + 2)}, {vr(T + 3)}")
            if to_lds:
                L.append(f"ds_write_b64 {vr(V_OW)}, {vr(B + 2 * half, 2)} offset:{t * OPITCH + dt * 32}")
        if not to_lds:
            L.append("s_nop 1")
            L.append(f"v_permlane16_swap_b32 {vr(B)}, {vr(B + 2)}")
            L.append(f"v_permlane16_swap_b32 {vr(B + 1)}, {vr(B + 3)}")
            L.append(f"buffer_store_dwordx4 {vr(B, 4)}, {vr(V_T2)}, {sr(S_OSRD, 4)}, {sr(S_T1)} offen offset:{dp * 64} {OPT.o_pol}")
    return L

def emit_bpart(e, n, o, with_stream, nside_prev, filler_after):
    par = 1
    side = "q" if with_stream else "o"
    mf, gaps, cap = build_schedule(n, side, o)
    for g in range(len(mf)):
        for x in gaps[g]:
            if x["k"] == "exp" and x["old"]:
                rr = rS(x["t"], x["kt"], x["r"]); e(f"v_exp_f32 {rr}, {rr}")
    for dt in range(8):
        for h in range(2):
            e(f"ds_read_b64_tr_b16 {rV(dt, h)}, {vr(V_AV + (dt & 3))} offset:{h * 4096 + (dt >> 2) * 1024}")
    for g in range(len(mf)):
        for x in gaps[g]:
            if x["k"] == "cvt" and x["old"]:
                t, j = x["t"], x["j"]; kt, jj = j >> 1, j & 1
                e(f"v_cvt_pk_bf16_f32 {rP(par, t, j)}, {rS(t, kt, 2*jj)}, {rS(t, kt, 2*jj+1)}")
    if with_stream:
        e(f"s_waitcnt vmcnt({2 * (4 + nside_prev)}) lgkmcnt(0)")
        e("s_barrier")
        e(f"s_mov_b32 m0, {sr(S_M0R)}")
        e("s_nop 0")
        emit_ring_group(e)
        e(f"s_mov_b32 m0, {DUMMY}")
        e("s_nop 0")
        e(f"buffer_load_dwordx4 {vr(V_LANE16)}, {sr(S_QSRD, 4)}, {sr(S_OOB)} offen lds")
    else:
        e("s_waitcnt lgkmcnt(0)")
    e("s_nop 0")

def merge(e, mf, fill, per_gap, lag=3):
    i = 0
    for j, m in enumerate(mf):
        e(m)
        k = 0
        while i < len(fill) and k < per_gap:
            ins, dep = fill[i]
            if dep is not None and j < dep + lag - 1: break
            e(ins); i += 1; k += 1
    if i < len(fill) and any(d is not None for _, d in fill[i:]):
        e("s_nop 7"); e("s_nop 1")
    while i < len(fill):
        e(fill[i][0]); i += 1

def emit_tail(e, n, side, o, name, filler=None):
    sb = 1 if n == 5 else 7
    filler = filler if filler is not None else []
    mm = mpass_mfmas(n)
    merge(e, mm, [(x, None) for x in filler[: 2 * len(mm)]], 2)
    del filler[: 2 * len(mm)]
    e("s_nop 7"); e("s_nop 1")
    for ins in mpass_valu(n): e(ins)
    emit_iter(e, n, side, o, 1, "A", filler=filler)
    while filler: e(filler.pop(0))
    stamp(e, o, sb + 2)
    n_other = 9 - n
    if side == "q":
        e(f"s_add_u32 {sr(S_CNT)}, {sr(S_OFF)}, {(4 * n_other + 1) * 8192}")
    else:
        e(f"s_add_u32 {sr(S_CNT)}, {sr(S_OFF)}, {(4 * n_other + 1) * 8192}")
    e(f"s_add_u32 {sr(S_END)}, {sr(S_OFF)}, {31 * 8192}")
    emit_iter(e, n, side, o, 0, "full", zeroC=True, first=True, vmn=(9 if side == "q" else 10))
    e.label(f"L_odd_{name}")
    emit_iter(e, n, side, o, 1, "full")
    emit_iter(e, n, side, o, 0, "full")
    if o.prof:
        e("s_memtime s[88:89]"); e("s_memrealtime s[90:91]"); e("s_waitcnt lgkmcnt(0)")
        e("s_lshl_b64 exec, 1, s92"); e("s_add_u32 s93, s92, 32"); e("v_mov_b32 v1, s88"); e("s_lshl_b64 exec, 1, s93"); e("s_add_u32 s92, s92, 1"); e("v_mov_b32 v1, s90"); e("s_mov_b64 exec, -1"); e("s_nop 4")
    e(f"s_cmp_eq_u32 {sr(S_OFF)}, {sr(S_CNT)}")
    e(f"s_cbranch_scc0 L_odd_{name}")
    e(f"s_cmp_eq_u32 {sr(S_CNT)}, {sr(S_END)}")
    e(f"s_cbranch_scc1 L_exit_{name}")
    e(f"s_mov_b32 {sr(S_CNT)}, {sr(S_END)}")
    e(f"s_mov_b32 {sr(S_SSRC)}, {sr(S_OOB)}")
    e(f"s_mov_b32 {sr(S_DS)}, 0")
    e(f"s_mov_b32 {sr(S_DD)}, 0")
    if side == "q":
        e(f"s_mov_b32 {sr(S_SDST)}, {DUMMY}")
        e(f"s_mov_b32 {sr(S_XS)}, 0")
        e(f"s_mov_b32 {sr(S_XD)}, 0")
    e(f"s_branch L_odd_{name}")
    e.label(f"L_exit_{name}")
    stamp(e, o, sb + 3)

def emit_cold(e, n, o, name):
    sb = 1 if n == 5 else 7
    n2 = 9 - n
    emit_qo(e, n, S_HEAD, S_QO)
    emit_qd_regs(e)
    e(f"s_mov_b32 {sr(S_OFF)}, {sr(S_OFF0)}")
    e(f"s_mov_b32 m0, {sr(S_M0P)}")
    e("s_nop 0")
    emit_ring_group(e)
    nq = o.q_first
    for t in range(n): emit_q_dma_tile(e, t)
    e(f"s_add_u32 m0, {sr(S_M0P)}, 8192"); e("s_nop 0")
    emit_ring_group(e)
    stamp(e, o, sb)
    e(f"v_add_u32 {vr(V_T1)}, {sr(S_STG)}, {vr(V_AK)}")
    e(f"v_add_u32 {vr(V_T2)}, {sr(S_STG)}, {vr(V_AK + 1)}")
    issued_after = 4
    groups = 2
    R0 = V_S
    for t in range(n):
        e(f"s_waitcnt vmcnt({4 * (n - 1 - t) + issued_after})")
        reads, valu = qscale_tile(t, o, True, V_T1, V_T2, R0 + (t & 1) * 16)
        for r in reads: e(r)
        if groups < 3:
            e(f"s_add_u32 m0, {sr(S_M0P)}, {groups * 8192}"); e("s_nop 0")
            emit_ring_group(e); groups += 1; issued_after += 4
        elif groups == 3:
            u = uid()
            e(f"s_cmp_lt_u32 {sr(S_W)}, 2")
            e(f"s_cbranch_scc0 L_nok_{u}")
            e(f"s_add_u32 m0, {sr(S_M0P)}, {3 * 8192}"); e("s_nop 0")
            emit_ring_group(e)
            e.label(f"L_nok_{u}")
            groups += 1
        e("s_waitcnt lgkmcnt(0)")
        for ins in valu: e(ins)
    assert groups == 4
    emit_qd_regs(e)
    e(f"s_add_u32 {sr(S_HEADN)}, {sr(S_HEAD)}, 1")
    emit_qo(e, n2, S_HEADN, S_QON)
    e(f"s_sub_u32 {sr(S_SSRC)}, {sr(S_QON)}, 3968")
    e(f"s_sub_u32 {sr(S_SDST)}, {sr(S_STG)}, 3072")
    e(f"s_mov_b32 {sr(S_DS)}, 3968"); e(f"s_mov_b32 {sr(S_XS)}, {128 ^ 3968}")
    e(f"s_mov_b32 {sr(S_DD)}, 3072"); e(f"s_mov_b32 {sr(S_XD)}, {1024 ^ 3072}")
    e("s_waitcnt vmcnt(8)")
    e("s_barrier")
    stamp(e, o, sb + 1)
    for kt in range(2):
        for c in range(4):
            e(f"ds_read_b128 {rK(kt, c)}, {vr(V_AK + (c & 1))} offset:{kt * 4096 + (c >> 1) * 1024}")
    e("s_waitcnt lgkmcnt(0)")
    e("s_barrier")
    e(f"s_mov_b32 m0, {sr(S_M0R)}")
    e("s_nop 0")
    emit_ring_group(e)
    e(f"s_mov_b32 m0, {DUMMY}")
    e("s_nop 0")
    e(f"buffer_load_dwordx4 {vr(V_LANE16)}, {sr(S_QSRD, 4)}, {sr(S_OOB)} offen lds")

def emit_trans(e, n1, n2, o):
    sb1 = 1 if n1 == 5 else 7
    sb2 = 1 if n2 == 5 else 7
    emit_bpart(e, n1, o, True, 1, None)
    e(f"v_add_u32 {vr(V_T1)}, {sr(S_STG)}, {vr(V_AK)}")
    e(f"v_add_u32 {vr(V_T2)}, {sr(S_STG)}, {vr(V_AK + 1)}")
    mf = []
    for t in range(n1):
        mf.append(mfma_str(("L", t), 1))
        for dt in range(8): mf.append(mfma_str(("PV", t, dt), 1))
    R0 = V_S
    reads0, valu0 = qscale_tile(0, o, False, V_T1, V_T2, R0)
    reads1, valu1 = qscale_tile(1, o, True, V_T1, V_T2, R0 + 16)
    for r in reads0: e(r)
    for r in reads1: e(r)
    e("s_waitcnt lgkmcnt(0)")
    merge(e, mf, [(x, None) for x in valu0], 2)
    for ins in valu1: e(ins)
    for t in range(2, n2):
        reads, valu = qscale_tile(t, o, True, V_T1, V_T2, R0 + (t & 1) * 16)
        for r in reads: e(r)
        e("s_waitcnt lgkmcnt(0)")
        for ins in valu: e(ins)
    stamp(e, o, 6)
    fill = []
    for t in range(n1): fill += epi_tile(t, o, True, pk=True)
    for ins in fill: e(ins)
    stamp(e, o, sb1 + 4)
    e(f"s_mov_b32 {sr(S_SSRC)}, {sr(S_QO)}")
    e(f"s_mov_b32 {sr(S_DS)}, 2048"); e(f"s_mov_b32 {sr(S_DD)}, 2176")
    e(f"v_lshrrev_b32 {vr(V_X)}, 4, v0")
    e(f"v_mul_u32_u24 {vr(V_X)}, 272, {vr(V_X)}")
    e(f"v_and_b32 {vr(V_X + 1)}, 15, v0")
    e(f"v_lshl_add_u32 {vr(V_X)}, {vr(V_X + 1)}, 4, {vr(V_X)}")
    e(f"v_add_u32 {vr(V_SA)}, {sr(S_STG)}, {vr(V_X)}")
    e(f"s_mov_b32 m0, {sr(S_M0R)}")
    e(f"s_mov_b32 {sr(S_BLK)}, 1")
    e(f"s_mov_b32 {sr(S_HEAD)}, {sr(S_HEADN)}")
    e(f"s_mov_b32 {sr(S_QO)}, {sr(S_QON)}")
    e("s_waitcnt lgkmcnt(0)")
    stamp(e, o, sb2 + 1)

def emit_final(e, n, o):
    emit_bpart(e, n, o, False, 0, None)
    e(f"v_and_b32 {vr(V_X)}, 15, v0")
    e(f"v_lshlrev_b32 {vr(V_T2)}, 8, {vr(V_X)}")
    e(f"v_bfe_u32 {vr(V_X)}, v0, 4, 1")
    e(f"v_lshl_add_u32 {vr(V_T2)}, {vr(V_X)}, 5, {vr(V_T2)}")
    e(f"v_lshrrev_b32 {vr(V_X)}, 5, v0")
    e(f"v_lshl_add_u32 {vr(V_T2)}, {vr(V_X)}, 4, {vr(V_T2)}")
    mf = []; fill = []
    for t in range(n):
        mf.append(mfma_str(("L", t), 1))
        for dt in range(8): mf.append(mfma_str(("PV", t, dt), 1))
        fill += [(x, len(mf) - 1) for x in epi_tile(t, o, False)]
    merge(e, mf, fill, o.epi_per_gap)
    stamp(e, o, (1 if n == 5 else 7) + 4)

def gen(o):
    global OPT
    OPT = o
    _sched_cache.clear()
    e = Em()
    e.raw(f"; @launch grid=(256,1,1) block=(256,1,1) lds={LDS_BYTES}")
    e.raw('.amdgcn_target "amdgcn-amd-amdhsa--gfx950"')
    e.raw(".text")
    e.raw(f".globl {KNAME}")
    e.raw(".p2align 8")
    e.raw(f".type {KNAME},@function")
    e.label(KNAME)
    e("s_cmp_ge_u32 s2, 256")
    e("s_cbranch_scc1 L_exit")
    e("s_load_dwordx4 s[4:7], s[0:1], 0")
    e("s_load_dwordx4 s[8:11], s[0:1], 16")
    if o.diag: e(f"s_load_dwordx2 {sr(S_WS, 2)}, s[0:1], 40")
    stamp(e, o, 0)
    if o.diag: e(f"s_memtime {sr(S_STAMP + 28, 2)}")
    e(f"v_lshrrev_b32 {vr(V_T0)}, 6, v0")
    e(f"v_and_b32 v0, 63, v0")
    e("s_nop 0")
    e(f"v_readfirstlane_b32 {sr(S_W)}, {vr(V_T0)}")
    e(f"s_and_b32 {sr(S_T0)}, s2, 7")
    e(f"s_lshr_b32 {sr(S_T1)}, s2, 3")
    e(f"s_and_b32 {sr(S_ROLE)}, {sr(S_T1)}, 1")
    e(f"s_andn2_b32 {sr(S_T1)}, {sr(S_T1)}, 1")
    e(f"s_lshl_b32 {sr(S_T0)}, {sr(S_T0)}, 5")
    e(f"s_add_u32 {sr(S_HEAD)}, {sr(S_T0)}, {sr(S_T1)}")
    e(f"s_mov_b32 {sr(S_BLK)}, 0")
    if o.prof: e("s_mov_b32 s92, 0")
    k = V_T0; g = V_T1; T = V_TMP
    e(f"v_lshrrev_b32 {vr(T)}, 3, v0")
    e(f"v_and_b32 {vr(T + 1)}, 7, v0")
    e(f"v_lshrrev_b32 {vr(T + 2)}, 1, {vr(T)}")
    e(f"v_lshlrev_b32 {vr(T + 3)}, 1, {vr(T + 2)}")
    e(f"s_cmp_lt_u32 {sr(S_W)}, 2")
    e(f"s_cselect_b64 vcc, -1, 0")
    for a1 in range(2):
        e(f"v_add_u32 {vr(T + 4)}, {4 * a1}, {vr(T + 2)}")
        e(f"v_cndmask_b32 {vr(T + 4)}, {vr(T + 3)}, {vr(T + 4)}, vcc")
        e(f"v_xor_b32 {vr(T + 4)}, {vr(T + 4)}, {vr(T + 1)}")
        e(f"v_lshlrev_b32 {vr(T + 4)}, 4, {vr(T + 4)}")
        e(f"v_lshl_add_u32 {vr(T + 4)}, {vr(T)}, 8, {vr(T + 4)}")
        e(f"v_add_u32 {vr(V_DMA + 2 * a1)}, {BIAS}, {vr(T + 4)}")
        e(f"v_mov_b32 {vr(V_DMA + 2 * a1 + 1)}, {vr(T + 4)}")
    e(f"v_and_b32 {vr(k)}, 15, v0")
    e(f"v_lshrrev_b32 {vr(g)}, 4, v0")
    e(f"v_lshlrev_b32 {vr(V_LANE16)}, 4, v0")
    e(f"v_lshrrev_b32 {vr(T)}, 3, {vr(k)}")
    e(f"v_lshlrev_b32 {vr(T)}, 11, {vr(T)}")
    e(f"v_and_b32 {vr(T + 1)}, 7, {vr(k)}")
    e(f"v_lshl_add_u32 {vr(T)}, {vr(T + 1)}, 7, {vr(T)}")
    e(f"v_bfe_u32 {vr(T + 1)}, {vr(k)}, 1, 3")
    for b in range(2):
        e(f"v_add_u32 {vr(T + 2)}, {4 * b}, {vr(g)}")
        e(f"v_xor_b32 {vr(T + 2)}, {vr(T + 2)}, {vr(T + 1)}")
        e(f"v_lshl_add_u32 {vr(V_AK + b)}, {vr(T + 2)}, 4, {vr(T)}")
    e(f"v_mul_u32_u24 {vr(V_OW)}, 272, {vr(k)}")
    e(f"v_lshl_add_u32 {vr(V_OW)}, {vr(g)}, 3, {vr(V_OW)}")
    e(f"v_bfe_u32 {vr(T)}, v0, 2, 2")
    e(f"v_and_b32 {vr(T + 1)}, 1, {vr(g)}")
    e(f"v_lshl_add_u32 {vr(T)}, {vr(T + 1)}, 2, {vr(T)}")
    e(f"v_lshrrev_b32 {vr(T + 1)}, 1, {vr(g)}")
    e(f"v_lshlrev_b32 {vr(T + 1)}, 11, {vr(T + 1)}")
    e(f"v_lshl_add_u32 {vr(T + 1)}, {vr(T)}, 7, {vr(T + 1)}")
    e(f"v_and_b32 {vr(T + 2)}, 1, v0")
    e(f"v_lshl_add_u32 {vr(T + 1)}, {vr(T + 2)}, 3, {vr(T + 1)}")
    e(f"v_add_u32 {vr(T + 1)}, {VREG}, {vr(T + 1)}")
    e(f"v_bfe_u32 {vr(T + 2)}, {vr(T)}, 1, 2")
    e(f"v_lshlrev_b32 {vr(T + 2)}, 1, {vr(T + 2)}")
    e(f"v_bfe_u32 {vr(T + 3)}, v0, 1, 1")
    for b in range(4):
        e(f"v_add_u32 {vr(T + 4)}, {2 * b}, {vr(T + 3)}")
        e(f"v_xor_b32 {vr(T + 4)}, {vr(T + 4)}, {vr(T + 2)}")
        e(f"v_lshl_add_u32 {vr(V_AV + b)}, {vr(T + 4)}, 4, {vr(T + 1)}")
    e(f"s_mov_b32 {sr(S_SCALE2)}, 0x{o.scale_bits:08x}")
    e(f"s_mov_b32 {sr(S_SCALE2 + 1)}, 0x{o.scale_bits:08x}")
    e(f"s_mov_b32 {sr(S_OOB)}, 0x{OOB:x}")
    e(f"v_mov_b32 {vr(T)}, 0x3f803f80")
    for i in range(4): e(f"v_accvgpr_write_b32 {ar(A_ONES + i)}, {vr(T)}")
    e(f"s_mul_i32 {sr(S_STG)}, {sr(S_W)}, {STGW}")
    e(f"s_add_u32 {sr(S_STG)}, {sr(S_STG)}, {STG0}")
    e(f"v_add_u32 {vr(V_OW)}, {sr(S_STG)}, {vr(V_OW)}")
    e("s_waitcnt lgkmcnt(0)")
    e(f"s_mov_b32 s12, s4"); e(f"s_mov_b32 s13, s5"); e(f"s_mov_b32 s14, {Q_BYTES}"); e(f"s_mov_b32 s15, 0x00020000")
    e(f"s_mov_b32 s20, s10"); e(f"s_mov_b32 s21, s11"); e(f"s_mov_b32 s22, {Q_BYTES}"); e(f"s_mov_b32 s23, 0x00020000")
    e(f"s_cmp_lt_u32 {sr(S_W)}, 2")
    e(f"s_cselect_b32 s16, s6, s8")
    e(f"s_cselect_b32 s17, s7, s9")
    e(f"s_sub_u32 s16, s16, {BIAS}")
    e(f"s_subb_u32 s17, s17, 0")
    e(f"s_add_u32 {sr(S_T0)}, {sr(S_HEAD)}, 2")
    e(f"s_mul_i32 s18, {sr(S_T0)}, {HEAD_KV}")
    e(f"s_add_u32 s18, s18, {BIAS}")
    e(f"s_mov_b32 s19, 0x00020000")
    e(f"s_and_b32 {sr(S_T0)}, {sr(S_W)}, 1")
    e(f"s_lshl_b32 {sr(S_T0)}, {sr(S_T0)}, 12")
    e(f"s_mul_i32 {sr(S_OFF0)}, {sr(S_HEAD)}, {HEAD_KV}")
    e(f"s_add_u32 {sr(S_OFF0)}, {sr(S_OFF0)}, {sr(S_T0)}")
    e(f"s_lshr_b32 {sr(S_T1)}, {sr(S_W)}, 1")
    e(f"s_mul_i32 {sr(S_T2)}, {sr(S_T1)}, {VREG}")
    e(f"s_add_u32 {sr(S_M0R)}, {sr(S_T0)}, {sr(S_T2)}")
    e(f"s_mul_i32 {sr(S_T1)}, {sr(S_T1)}, 8192")
    e(f"s_add_u32 {sr(S_M0P)}, {sr(S_M0R)}, {sr(S_T1)}")
    e(f"s_cmp_eq_u32 {sr(S_ROLE)}, 0")
    e("s_cbranch_scc0 L_role1")
    for (n1, n2, r) in ((5, 4, "r0"), (4, 5, "r1")):
        if r == "r1": e.label("L_role1")
        emit_cold(e, n1, o, r)
        emit_tail(e, n1, "q", o, f"{r}a")
        emit_trans(e, n1, n2, o)
        emit_tail(e, n2, "o", o, f"{r}b")
        emit_final(e, n2, o)
        e("s_branch L_done")
    e.label("L_done")
    if o.diag:
        e("s_waitcnt vmcnt(0) lgkmcnt(0)")
        stamp(e, o, 13)
        e(f"s_memtime {sr(S_STAMP + 30, 2)}")
        e("s_waitcnt lgkmcnt(0)")
        e(f"s_lshl_b32 {sr(S_T0)}, s2, 2")
        e(f"s_add_u32 {sr(S_T0)}, {sr(S_T0)}, {sr(S_W)}")
        e(f"s_lshl_b32 {sr(S_T0)}, {sr(S_T0)}, 7")
        e(f"s_mov_b32 s4, {sr(S_WS)}"); e(f"s_mov_b32 s5, {sr(S_WS + 1)}"); e("s_mov_b32 s6, 0x200000"); e("s_mov_b32 s7, 0x00020000")
        if o.prof:
            e(f"v_lshlrev_b32 v2, 2, v0")
            e(f"s_lshl_b32 s93, {sr(S_T0)}, 1")
            e(f"s_add_u32 s93, s93, 0x20000")
            e(f"v_add_u32 v2, s93, v2")
            e(f"buffer_store_dword v1, v2, s[4:7], 0 offen")
            e("s_waitcnt vmcnt(0)")
        for i in range(32): e(f"v_writelane_b32 v1, {sr(S_STAMP + i)}, {i}") if i else e(f"v_mov_b32 v1, {sr(S_STAMP)}")
        e(f"v_lshlrev_b32 v2, 2, v0")
        e(f"v_add_u32 v2, {sr(S_T0)}, v2")
        e("v_cmp_gt_u32 vcc, 32, v0")
        e("s_and_saveexec_b64 s[86:87], vcc")
        e("buffer_store_dword v1, v2, s[4:7], 0 offen")
        e("s_waitcnt vmcnt(0)")
    e.label("L_exit")
    e("s_endpgm")
    e.raw('.section .rodata,"a"')
    e.raw(".p2align 6")
    e.raw(f".amdhsa_kernel {KNAME}")
    e.raw("  .amdhsa_next_free_vgpr 512")
    e.raw("  .amdhsa_next_free_sgpr 96")
    e.raw("  .amdhsa_accum_offset 256")
    e.raw("  .amdhsa_group_segment_fixed_size 0")
    e.raw("  .amdhsa_kernarg_size 48")
    e.raw("  .amdhsa_user_sgpr_count 2")
    e.raw("  .amdhsa_user_sgpr_kernarg_segment_ptr 1")
    e.raw("  .amdhsa_system_sgpr_workgroup_id_x 1")
    e.raw(".end_amdhsa_kernel")
    return e.text()

def default_opt():
    import struct, math
    o = Opt()
    o.pv_order = 'dt'; o.lat_exp = 3; o.ephase = 0; o.m_back = 0; o.v_start = 0; o.lat_ds = 6; o.dma_step = 3
    o.diag = False; o.diag_cyc = False
    o.epi_per_gap = 2; o.q_first = 5; o.prof = False; o.x_nobar = False; o.x_nodma = False; o.x_novm = False
    o.kv_pol = "nt"; o.q_pol = "nt"; o.o_pol = ""
    o.scale_bits = struct.unpack("<I", struct.pack("<f", (128 ** -0.5) * math.log2(math.e)))[0]
    return o

if __name__ == "__main__":
    ap = argparse.ArgumentParser()
    ap.add_argument("out")
    ap.add_argument("--diag", action="store_true")
    ap.add_argument("--cyc", action="store_true")
    ap.add_argument("--set", action="append", default=[])
    a = ap.parse_args()
    o = default_opt()
    o.diag = a.diag; o.diag_cyc = a.cyc
    for kv in a.set:
        k, v = kv.split("=")
        setattr(o, k, eval(v))
    open(a.out, "w").write(gen(o))
```

```python
import sys, argparse

KNAME = "standalone__mha_softmax__near_ridge_kernel"
NHEAD = 256; SQ = 576; SK = 1024; D = 128
Q_BYTES = NHEAD * SQ * D * 2
HEAD_KV = SK * D * 2
HEAD_Q = SQ * D * 2
BIAS = 896
VREG = 32768
STG0 = 65536
STGW = 21760
DUMMY = STG0 + 4 * STGW
LDS_BYTES = DUMMY + 3072
OPITCH = 4352

S_QSRD = 12; S_KVSRD = 16; S_OSRD = 20
S_W = 24; S_OFF = 25; S_CNT = 26; S_END = 27; S_BLK = 28; S_HEAD = 29; S_QO = 30; S_QON = 31
S_M0R = 32; S_STG = 33; S_SSRC = 34; S_SDST = 35; S_DS = 36; S_DD = 37; S_XS = 38; S_XD = 39
S_T0 = 40; S_T1 = 41; S_T2 = 42; S_T3 = 43; S_SCALE2 = 44; S_OFF0 = 46; S_M0P = 47
S_STAMP = 48
S_WS = 80
S_ROLE = 82; S_OOB = 83; S_THR = 84; S_HEADN = 85; S_SAVE = 86
OOB = 0x7ff00000
V_T0 = 1; V_T1 = 2; V_T2 = 3
V_AK = 4
V_AV = 6
V_DMA = 10
V_LANE16 = 14
V_OW = 15
V_NEGM = 16
V_S = 36
V_P = 76
V_TMP = 116
V_SD = 116
V_SA = 120
V_QD = 122
V_X = 124
V_O = 128
A_Q = 0; A_K = 80; A_V = 112; A_L = 144; A_ONES = 164; A_O4 = 168

def vr(b, n=1): return f"v{b}" if n == 1 else f"v[{b}:{b+n-1}]"
def ar(b, n=1): return f"a{b}" if n == 1 else f"a[{b}:{b+n-1}]"
def sr(b, n=1): return f"s{b}" if n == 1 else f"s[{b}:{b+n-1}]"
def rS(t, kt, r=None):
    b = V_S + t * 8 + kt * 4
    return vr(b, 4) if r is None else vr(b + r)
def rP(par, t, j=None):
    b = V_P + par * 20 + t * 4
    return vr(b, 4) if j is None else vr(b + j)
def rNEGM(t): return vr(V_NEGM + 4 * t, 4)
def rO(t, dt, r=None):
    if t < 4:
        b = V_O + t * 32 + dt * 4
        return vr(b, 4) if r is None else vr(b + r)
    b = A_O4 + dt * 4
    return ar(b, 4) if r is None else ar(b + r)
def rQ(t, c): return ar(A_Q + t * 16 + c * 4, 4)
def rK(kt, c): return ar(A_K + (kt * 4 + c) * 4, 4)
def rV(dt, h=None):
    b = A_V + dt * 4
    return ar(b, 4) if h is None else ar(b + 2 * h, 2)
def rL(t): return ar(A_L + 4 * t, 4)

class Opt: pass
OPT = None

class Em:
    def __init__(self): self.l = []
    def __call__(self, s): self.l.append("  " + s)
    def label(self, s): self.l.append(s + ":")
    def raw(self, s): self.l.append(s)
    def text(self): return "\n".join(self.l) + "\n"

def mfma_list(n, o):
    L = []
    for t in range(n):
        for kt in range(2):
            for c in range(4): L.append(("QK", t, kt, c))
    for t in range(n): L.append(("L", t))
    if o.pv_order == "dt":
        for dt in range(8):
            for t in range(n): L.append(("PV", t, dt))
    else:
        for t in range(n):
            for dt in range(8): L.append(("PV", t, dt))
    return L

_sched_cache = {}
def build_schedule(n, side, o):
    key = (n, side)
    if key in _sched_cache: return _sched_cache[key]
    mf = mfma_list(n, o)
    G = len(mf)
    idx = {m: i for i, m in enumerate(mf)}
    nE = 8 * n
    isE = [False] * G
    for k in range(nE): isE[(int(k * G / nE) + o.ephase) % G] = True
    assert sum(isE) == nE and not isE[G - 1]
    gaps = [[] for _ in range(G)]
    cap = [[0 if isE[g] else 2 for g in range(G)] for _ in range(2)]
    order = sorted((idx[("QK", t, kt, 3)] + o.lat_exp, t, kt) for t in range(n) for kt in range(2))
    pos = order[0][0] - 1
    exp_pos = {}
    for (rdy, t, kt) in order:
        for r in range(4):
            pos += 1
            while not (isE[pos % G] and not gaps[pos % G]): pos += 1
            assert pos >= rdy
            gaps[pos % G].append(dict(k="exp", t=t, kt=kt, r=r, old=(pos >= G)))
            exp_pos[(t, kt, r)] = pos
            assert pos < G + idx[("QK", t, kt, 0)]
    VALU = ("cvt", "vxor", "vadd")
    DS = ("dsK", "dsV", "dsS")
    def place(item, lo, hi, alone=False, rev=False):
        on = item.get("on")
        pars = (0, 1) if on is None else (on,)
        rng = range(lo, hi + 1) if not rev else range(hi, lo - 1, -1)
        for p in rng:
            g = p % G
            if isE[g]: continue
            if alone:
                if all(cap[q][g] == 2 for q in pars) and not gaps[g]:
                    for q in pars: cap[q][g] = 0
                    gaps[g].append(item); item["pos"] = p; return p
                continue
            if any(cap[q][g] == 0 for q in pars): continue
            if any(x["k"] in ("dma", "sdma", "sst") for x in gaps[g]): continue
            for q in pars: cap[q][g] -= 1
            if item["k"] in DS and any(x["k"] in VALU for x in gaps[g]): gaps[g].insert(0, item)
            elif item["k"] not in VALU and any(x["k"] in VALU for x in gaps[g]) and item["k"] != "kwait": gaps[g].insert(0, item)
            else: gaps[g].append(item)
            item["pos"] = p
            return p
        raise RuntimeError(f"n={n} side={side}: cannot place {item} in [{lo},{hi}]")
    for q in range(2): cap[q][G - 1] = 0
    gaps[G - 1].append(dict(k="ctl"))
    for (rdy, t, kt) in order:
        for jj in range(2):
            p = exp_pos[(t, kt, 2 * jj + 1)]
            it = dict(k="cvt", t=t, j=kt * 2 + jj)
            pp = place(it, p + 1, p + 8)
            it["old"] = pp >= G
            assert pp < G + idx[("QK", t, kt, 0)]
            first_use = min(i for i, m in enumerate(mf) if m[0] in ("L", "PV") and m[1] == t)
            assert pp + 1 < G + first_use
    firstV = {dt: min(i for i, m in enumerate(mf) if m[0] == "PV" and m[2] == dt) for dt in range(8)}
    firstPV = min(firstV.values())
    mpos = None
    for p in range(firstPV - 1 - o.m_back, 8 * n - 8, -1):
        if not isE[p] and cap[0][p] == 2 and cap[1][p] == 2:
            cap[0][p] = cap[1][p] = 0; gaps[p] += [dict(k="mwait"), dict(k="bar")]; mpos = p; break
    assert mpos is not None
    p = o.v_start
    if side == "o": place(dict(k="dsS"), p, mpos - o.lat_ds)
    for dt in range(8):
        for h in range(2):
            pp = place(dict(k="dsV", dt=dt, h=h), p, mpos - o.lat_ds)
            p = max(p, pp)
    lastdsV = p
    lastK = {(kt, c): max(i for i, m in enumerate(mf) if m[0] == "QK" and m[2] == kt and m[3] == c) for kt in range(2) for c in range(4)}
    pm0 = place(dict(k="m0"), mpos + 1, G - 2)
    p = pm0 + 1
    kp = mpos + 1
    kl = [(kt, c) for kt in range(2) for c in range(4)]
    lastdma = None
    for b in range(4):
        lastdma = place(dict(k="dma", b=b), p, G - 2, alone=True)
        p = lastdma + o.dma_step
        for _ in range(2):
            kt, c = kl.pop(0)
            kp = place(dict(k="dsK", kt=kt, c=c), max(kp, lastK[(kt, c)]), G - 2 - o.lat_ds)
    lastdsK = kp
    place(dict(k="kwait"), lastdsK + o.lat_ds, G - 2, rev=True)
    place(dict(k="soff"), lastdma + 1, G - 2)
    if side == "q":
        place(dict(k="m0tog", on=0), lastdma + 1, G - 2)
        pm = place(dict(k="sm0"), lastdma + 1, G - 3)
        ps = place(dict(k="sdma"), pm + 1, G - 2, alone=True)
        q0 = place(dict(k="supd", i=0, on=1), 0, mpos - 1)
        q1 = place(dict(k="supd", i=1, on=1), 0, mpos - 1)
        place(dict(k="supd", i=2, on=1), q0 + 1, G - 2)
        place(dict(k="supd", i=3, on=1), q1 + 1, G - 2)
    elif side == "o":
        ps = place(dict(k="sst"), mpos + 1, G - 2, alone=True)
        place(dict(k="supd", i=0, on=0), ps + 1, G - 2)
        place(dict(k="vadd", on=0), gaps_pos_dsS(gaps) + 1, G - 2)
    for i in range(4): place(dict(k="vxor", reg=V_AV + i, on=0), lastdsV + 1, G - 2)
    for i in range(2): place(dict(k="vxor", reg=V_AK + i, on=1), lastdsK + 1, G - 2)
    _sched_cache[key] = (mf, gaps, cap)
    return mf, gaps, cap

def gaps_pos_dsS(gaps):
    return [x["pos"] for g in gaps for x in g if x["k"] == "dsS"][0]

def describe(n, side, o):
    mf, gaps, cap = build_schedule(n, side, o)
    for g, m in enumerate(mf):
        print(g, m, [(x["k"], x.get("t", ""), x.get("dt", x.get("kt", x.get("j", x.get("b", x.get("i", "")))))) for x in gaps[g]], "free", cap[0][g], cap[1][g])
    print("free slots:", sum(cap[0]), sum(cap[1]))

def mfma_str(m, par, zeroC=False):
    if m[0] == "QK":
        _, t, kt, c = m
        C = rNEGM(t) if c == 0 else rS(t, kt)
        return f"v_mfma_f32_16x16x32_bf16 {rS(t, kt)}, {rK(kt, c)}, {rQ(t, c)}, {C}"
    if m[0] == "L":
        t = m[1]
        return f"v_mfma_f32_16x16x32_bf16 {rL(t)}, {ar(A_ONES, 4)}, {rP(par, t)}, {'0' if zeroC else rL(t)}"
    _, t, dt = m
    return f"v_mfma_f32_16x16x32_bf16 {rO(t, dt)}, {rV(dt)}, {rP(par, t)}, {'0' if zeroC else rO(t, dt)}"

def dma_str(b):
    return f"buffer_load_dwordx4 {vr(V_DMA + b)}, {sr(S_KVSRD, 4)}, {sr(S_OFF)} offen offset:{b * 1024} {OPT.kv_pol} lds"

def emit_iter(e, n, side, o, par, mode, zeroC=False, vmn=None, filler=None, first=False):
    mf, gaps, cap = build_schedule(n, side, o)
    newpar = par ^ 1
    v_imm = ((par + 1) & 1) * 8192
    k_imm = par * 8192
    nside = 1 if side else 0
    if vmn is None: vmn = 2 * (4 + nside)
    lds_q = []
    def fill(k=1):
        if filler:
            for _ in range(k):
                if filler: e(filler.pop(0))
    for g, m in enumerate(mf):
        isA = m[0] == "QK"
        if isA or mode == "full": e(mfma_str(m, par, zeroC))
        for x in gaps[g]:
            k = x["k"]
            A = mode == "A"
            if k == "exp":
                if x["old"] and A: fill(2); continue
                rr = rS(x["t"], x["kt"], x["r"]); e(f"v_exp_f32 {rr}, {rr}")
            elif k == "cvt":
                if x["old"] and A: fill(); continue
                pb = par if x["old"] else newpar
                t, j = x["t"], x["j"]; kt, jj = j >> 1, j & 1
                if A and g >= 8 * n: e("s_nop 0")
                e(f"v_cvt_pk_bf16_f32 {rP(pb, t, j)}, {rS(t, kt, 2*jj)}, {rS(t, kt, 2*jj+1)}")
            elif k == "dsV":
                if A: fill(); continue
                dt, h = x["dt"], x["h"]
                e(f"ds_read_b64_tr_b16 {rV(dt, h)}, {vr(V_AV + (dt & 3))} offset:{v_imm + h * 4096 + (dt >> 2) * 1024}")
            elif k == "dsS":
                if A or first: fill(); continue
                e(f"ds_read_b128 {vr(V_SD, 4)}, {vr(V_SA)} offset:{0 if par == 1 else 1088}")
            elif k == "dsK":
                kt, c = x["kt"], x["c"]
                e(f"ds_read_b128 {rK(kt, c)}, {vr(V_AK + (c & 1))} offset:{k_imm + kt * 4096 + (c >> 1) * 1024}")
            elif k == "kwait":
                e("s_waitcnt lgkmcnt(0)")
            elif k == "mwait":
                if A: fill(); continue
                e(f"s_waitcnt vmcnt({vmn}) lgkmcnt(0)" if not OPT.x_novm else "s_waitcnt lgkmcnt(0)")
            elif k == "bar":
                if A: fill(); continue
                if not OPT.x_nobar: e("s_barrier")
            elif k == "m0":
                if A: continue
                if side == "q":
                    if par == 0: e(f"s_xor_b32 m0, {sr(S_M0R)}, 0x2000")
                    else: e(f"s_mov_b32 m0, {sr(S_M0R)}")
                else:
                    d = 0x2000 if par == 0 else 0x6000
                    e(f"s_xor_b32 m0, m0, 0x{d:x}")
            elif k == "m0tog":
                if A or par != 0: continue
                e(f"s_xor_b32 {sr(S_M0R)}, {sr(S_M0R)}, 0x4000")
            elif k == "dma":
                if A: fill(2); continue
                if not OPT.x_nodma: e(dma_str(x["b"]))
            elif k == "soff":
                if A: continue
                e(f"s_add_u32 {sr(S_OFF)}, {sr(S_OFF)}, 8192")
            elif k == "sm0":
                if A: continue
                e(f"s_mov_b32 m0, {DUMMY if first else sr(S_SDST)}")
            elif k == "sdma":
                if A: fill(2); continue
                a1 = 0 if par == 1 else 1
                e(f"buffer_load_dwordx4 {vr(V_QD + a1)}, {sr(S_QSRD, 4)}, {sr(S_OOB if first else S_SSRC)} offen offset:{a1 * 2048} {OPT.q_pol} lds")
            elif k == "sst":
                if A: fill(2); continue
                e(f"buffer_store_dwordx4 {vr(V_SD, 4)}, {vr(V_LANE16)}, {sr(S_OSRD, 4)}, {sr(S_OOB if first else S_SSRC)} offen offset:{0 if par == 1 else 1024} {OPT.o_pol}")
            elif k == "supd":
                if A or first or par != x["on"]: continue
                i = x["i"]
                if side == "q":
                    e([f"s_add_u32 {sr(S_SSRC)}, {sr(S_SSRC)}, {sr(S_DS)}", f"s_add_u32 {sr(S_SDST)}, {sr(S_SDST)}, {sr(S_DD)}",
                       f"s_xor_b32 {sr(S_DS)}, {sr(S_DS)}, {sr(S_XS)}", f"s_xor_b32 {sr(S_DD)}, {sr(S_DD)}, {sr(S_XD)}"][i])
                else:
                    e(f"s_add_u32 {sr(S_SSRC)}, {sr(S_SSRC)}, {sr(S_DS)}")
            elif k == "vadd":
                if A or first or par != x["on"]: continue
                e(f"v_add_u32 {vr(V_SA)}, {sr(S_DD)}, {vr(V_SA)}")
            elif k == "vxor":
                if x["on"] != par: continue
                if A and x["reg"] >= V_AV: continue
                e(f"v_xor_b32 {vr(x['reg'])}, 0x4000, {vr(x['reg'])}")
            elif k == "ctl":
                pass
            else:
                raise ValueError(k)

def stamp(e, o, i):
    if not o.diag: return
    if o.diag_cyc: e(f"s_memtime {sr(S_STAMP + 2 * i, 2)}")
    else: e(f"s_memrealtime {sr(S_STAMP + 2 * i, 2)}")

_uid = [0]
def uid():
    _uid[0] += 1
    return _uid[0]

def emit_ring_group(e):
    for b in range(4): e(dma_str(b))
    e(f"s_add_u32 {sr(S_OFF)}, {sr(S_OFF)}, 8192")

def emit_qo(e, n, head_sreg, dst):
    rowbase = 0 if n == 5 else 320
    e(f"s_mul_i32 {sr(dst)}, {sr(head_sreg)}, {HEAD_Q}")
    e(f"s_mul_i32 {sr(S_T0)}, {sr(S_W)}, {16 * n * 256}")
    e(f"s_add_u32 {sr(dst)}, {sr(dst)}, {sr(S_T0)}")
    e(f"s_add_u32 {sr(dst)}, {sr(dst)}, {rowbase * 256}")

def emit_qd_regs(e):
    T = V_X
    e(f"v_lshrrev_b32 {vr(T)}, 3, v0")
    e(f"v_and_b32 {vr(T + 1)}, 7, v0")
    e(f"v_lshrrev_b32 {vr(T + 2)}, 1, {vr(T)}")
    for a1 in range(2):
        e(f"v_add_u32 {vr(T + 3)}, {4 * a1}, {vr(T + 2)}")
        e(f"v_xor_b32 {vr(T + 3)}, {vr(T + 3)}, {vr(T + 1)}")
        e(f"v_lshlrev_b32 {vr(T + 3)}, 4, {vr(T + 3)}")
        e(f"v_lshl_add_u32 {vr(V_QD + a1)}, {vr(T)}, 8, {vr(T + 3)}")

def emit_q_dma_tile(e, t):
    for hh in range(2):
        e(f"s_add_u32 m0, {sr(S_STG)}, {t * 4096 + hh * 1024}")
        e(f"s_add_u32 {sr(S_T2)}, {sr(S_QO)}, {t * 4096 + hh * 128}")
        for a1 in range(2):
            e(f"buffer_load_dwordx4 {vr(V_QD + a1)}, {sr(S_QSRD, 4)}, {sr(S_T2)} offen offset:{a1 * 2048} {OPT.q_pol} lds")

def qscale_tile(t, o, pk, AQ0, AQ1, R):
    reads = [f"ds_read_b128 {vr(R + 4 * c, 4)}, {vr(AQ0 if (c & 1) == 0 else AQ1)} offset:{t * 4096 + (c >> 1) * 1024}" for c in range(4)]
    chains = []
    for i in range(16):
        src = R + i
        t0 = V_TMP + (i % 4) * 2
        ch = [f"v_lshlrev_b32 {vr(t0)}, 16, {vr(src)}", f"v_and_b32 {vr(t0 + 1)}, 0xffff0000, {vr(src)}"]
        if pk: ch.append(f"v_pk_mul_f32 {vr(t0, 2)}, {vr(t0, 2)}, {sr(S_SCALE2, 2)}")
        else: ch += [f"v_mul_f32 {vr(t0)}, {sr(S_SCALE2)}, {vr(t0)}", f"v_mul_f32 {vr(t0 + 1)}, {sr(S_SCALE2)}, {vr(t0 + 1)}"]
        ch += [f"v_cvt_pk_bf16_f32 {vr(t0)}, {vr(t0)}, {vr(t0 + 1)}", f"v_accvgpr_write_b32 {ar(A_Q + t * 16 + i)}, {vr(t0)}"]
        chains.append(ch)
    out = []
    for g in range(4):
        ch = chains[4 * g:4 * g + 4]
        for s in range(len(ch[0])):
            for j in range(4): out.append(ch[j][s])
    return reads, out

def mpass_mfmas(n):
    L = []
    for t in range(n):
        for c in range(4):
            C = "0" if c == 0 else rS(t, 0)
            L.append(f"v_mfma_f32_16x16x32_bf16 {rS(t, 0)}, {rK(0, c)}, {rQ(t, c)}, {C}")
    return L

def mpass_valu(n):
    X = lambda t: V_P + 20 + 2 * t
    L = []
    for t in range(n): L.append(f"v_max3_f32 {vr(X(t))}, {rS(t, 0, 0)}, {rS(t, 0, 1)}, {rS(t, 0, 2)}")
    for t in range(n): L.append(f"v_max_f32 {vr(X(t))}, {vr(X(t))}, {rS(t, 0, 3)}")
    for t in range(n): L.append(f"v_mov_b32 {vr(X(t) + 1)}, {vr(X(t))}")
    L.append("s_nop 1")
    for t in range(n): L.append(f"v_permlane32_swap_b32 {vr(X(t))}, {vr(X(t) + 1)}")
    L.append("s_nop 1")
    for t in range(n): L.append(f"v_max_f32 {vr(X(t))}, {vr(X(t))}, {vr(X(t) + 1)}")
    for t in range(n): L.append(f"v_mov_b32 {vr(X(t) + 1)}, {vr(X(t))}")
    L.append("s_nop 1")
    for t in range(n): L.append(f"v_permlane16_swap_b32 {vr(X(t))}, {vr(X(t) + 1)}")
    L.append("s_nop 1")
    for t in range(n): L.append(f"v_max_f32 {vr(X(t))}, {vr(X(t))}, {vr(X(t) + 1)}")
    for t in range(n):
        for i in range(4): L.append(f"v_sub_f32 {vr(V_NEGM + 4 * t + i)}, 0, {vr(X(t))}")
    L.append("s_nop 1")
    return L

def epi_tile(t, o, to_lds, pk=False):
    L = []
    R = V_X + 3
    L.append(f"v_accvgpr_read_b32 {vr(R)}, {ar(A_L + 4 * t)}")
    if not to_lds: L.append(f"s_add_u32 {sr(S_T1)}, {sr(S_QO)}, {t * 4096}")
    else: L.append("s_nop 0")
    L.append(f"v_rcp_f32 {vr(R)}, {vr(R)}")
    L.append("s_nop 0")
    if pk: L.append(f"v_mov_b32 {vr(R - 1)}, {vr(R)}")
    for dp in range(4):
        B = V_S + ((t * 4 + dp) % 4) * 4
        for half in range(2):
            dt = 2 * dp + half
            T = V_TMP + half * 4
            if t >= 4:
                for r in range(4): L.append(f"v_accvgpr_read_b32 {vr(T + r)}, {rO(t, dt, r)}")
                src = lambda r: vr(T + r); src2 = lambda r: vr(T + r, 2)
            else:
                b0 = V_O + t * 32 + dt * 4
                src = lambda r: vr(b0 + r); src2 = lambda r: vr(b0 + r, 2)
            if pk:
                for r in (0, 2): L.append(f"v_pk_mul_f32 {vr(T + r, 2)}, {src2(r)}, {vr(R - 1, 2)}")
            else:
                for r in range(4): L.append(f"v_mul_f32 {vr(T + r)}, {src(r)}, {vr(R)}")
            L.append(f"v_cvt_pk_bf16_f32 {vr(B + 2 * half)}, {vr(T)}, {vr(T + 1)}")
            L.append(f"v_cvt_pk_bf16_f32 {vr(B + 2 * half + 1)}, {vr(T + 2)}, {vr(T + 3)}")
            if to_lds:
                L.append(f"ds_write_b64 {vr(V_OW)}, {vr(B + 2 * half, 2)} offset:{t * OPITCH + dt * 32}")
        if not to_lds:
            L.append("s_nop 1")
            L.append(f"v_permlane16_swap_b32 {vr(B)}, {vr(B + 2)}")
            L.append(f"v_permlane16_swap_b32 {vr(B + 1)}, {vr(B + 3)}")
            L.append(f"buffer_store_dwordx4 {vr(B, 4)}, {vr(V_T2)}, {sr(S_OSRD, 4)}, {sr(S_T1)} offen offset:{dp * 64} {OPT.o_pol}")
    return L

def emit_bpart(e, n, o, with_stream, nside_prev, filler_after):
    par = 1
    side = "q" if with_stream else "o"
    mf, gaps, cap = build_schedule(n, side, o)
    for g in range(len(mf)):
        for x in gaps[g]:
            if x["k"] == "exp" and x["old"]:
                rr = rS(x["t"], x["kt"], x["r"]); e(f"v_exp_f32 {rr}, {rr}")
    for dt in range(8):
        for h in range(2):
            e(f"ds_read_b64_tr_b16 {rV(dt, h)}, {vr(V_AV + (dt & 3))} offset:{h * 4096 + (dt >> 2) * 1024}")
    for g in range(len(mf)):
        for x in gaps[g]:
            if x["k"] == "cvt" and x["old"]:
                t, j = x["t"], x["j"]; kt, jj = j >> 1, j & 1
                e(f"v_cvt_pk_bf16_f32 {rP(par, t, j)}, {rS(t, kt, 2*jj)}, {rS(t, kt, 2*jj+1)}")
    if with_stream:
        e(f"s_waitcnt vmcnt({2 * (4 + nside_prev)}) lgkmcnt(0)")
        e("s_barrier")
        e(f"s_mov_b32 m0, {sr(S_M0R)}")
        e("s_nop 0")
        emit_ring_group(e)
        e(f"s_mov_b32 m0, {DUMMY}")
        e("s_nop 0")
        e(f"buffer_load_dwordx4 {vr(V_LANE16)}, {sr(S_QSRD, 4)}, {sr(S_OOB)} offen lds")
    else:
        e("s_waitcnt lgkmcnt(0)")
    e("s_nop 0")

def merge(e, mf, fill, per_gap, lag=3):
    i = 0
    for j, m in enumerate(mf):
        e(m)
        k = 0
        while i < len(fill) and k < per_gap:
            ins, dep = fill[i]
            if dep is not None and j < dep + lag - 1: break
            e(ins); i += 1; k += 1
    if i < len(fill) and any(d is not None for _, d in fill[i:]):
        e("s_nop 7"); e("s_nop 1")
    while i < len(fill):
        e(fill[i][0]); i += 1

def emit_tail(e, n, side, o, name, filler=None):
    sb = 1 if n == 5 else 7
    filler = filler if filler is not None else []
    mm = mpass_mfmas(n)
    merge(e, mm, [(x, None) for x in filler[: 2 * len(mm)]], 2)
    del filler[: 2 * len(mm)]
    e("s_nop 7"); e("s_nop 1")
    for ins in mpass_valu(n): e(ins)
    emit_iter(e, n, side, o, 1, "A", filler=filler)
    while filler: e(filler.pop(0))
    stamp(e, o, sb + 2)
    n_other = 9 - n
    if side == "q":
        e(f"s_add_u32 {sr(S_CNT)}, {sr(S_OFF)}, {(4 * n_other + 1) * 8192}")
    else:
        e(f"s_add_u32 {sr(S_CNT)}, {sr(S_OFF)}, {(4 * n_other + 1) * 8192}")
    e(f"s_add_u32 {sr(S_END)}, {sr(S_OFF)}, {31 * 8192}")
    emit_iter(e, n, side, o, 0, "full", zeroC=True, first=True, vmn=(9 if side == "q" else 10))
    e.label(f"L_odd_{name}")
    emit_iter(e, n, side, o, 1, "full")
    emit_iter(e, n, side, o, 0, "full")
    if o.prof:
        e("s_memtime s[88:89]"); e("s_memrealtime s[90:91]"); e("s_waitcnt lgkmcnt(0)")
        e("s_lshl_b64 exec, 1, s92"); e("s_add_u32 s93, s92, 32"); e("v_mov_b32 v1, s88"); e("s_lshl_b64 exec, 1, s93"); e("s_add_u32 s92, s92, 1"); e("v_mov_b32 v1, s90"); e("s_mov_b64 exec, -1"); e("s_nop 4")
    e(f"s_cmp_eq_u32 {sr(S_OFF)}, {sr(S_CNT)}")
    e(f"s_cbranch_scc0 L_odd_{name}")
    e(f"s_cmp_eq_u32 {sr(S_CNT)}, {sr(S_END)}")
    e(f"s_cbranch_scc1 L_exit_{name}")
    e(f"s_mov_b32 {sr(S_CNT)}, {sr(S_END)}")
    e(f"s_mov_b32 {sr(S_SSRC)}, {sr(S_OOB)}")
    e(f"s_mov_b32 {sr(S_DS)}, 0")
    e(f"s_mov_b32 {sr(S_DD)}, 0")
    if side == "q":
        e(f"s_mov_b32 {sr(S_SDST)}, {DUMMY}")
        e(f"s_mov_b32 {sr(S_XS)}, 0")
        e(f"s_mov_b32 {sr(S_XD)}, 0")
    e(f"s_branch L_odd_{name}")
    e.label(f"L_exit_{name}")
    stamp(e, o, sb + 3)

def emit_cold(e, n, o, name):
    sb = 1 if n == 5 else 7
    n2 = 9 - n
    emit_qo(e, n, S_HEAD, S_QO)
    emit_qd_regs(e)
    e(f"s_mov_b32 {sr(S_OFF)}, {sr(S_OFF0)}")
    e(f"s_mov_b32 m0, {sr(S_M0P)}")
    e("s_nop 0")
    emit_ring_group(e)
    nq = o.q_first
    for t in range(n): emit_q_dma_tile(e, t)
    e(f"s_add_u32 m0, {sr(S_M0P)}, 8192"); e("s_nop 0")
    emit_ring_group(e)
    stamp(e, o, sb)
    e(f"v_add_u32 {vr(V_T1)}, {sr(S_STG)}, {vr(V_AK)}")
    e(f"v_add_u32 {vr(V_T2)}, {sr(S_STG)}, {vr(V_AK + 1)}")
    issued_after = 4
    groups = 2
    R0 = V_S
    for t in range(n):
        e(f"s_waitcnt vmcnt({4 * (n - 1 - t) + issued_after})")
        reads, valu = qscale_tile(t, o, True, V_T1, V_T2, R0 + (t & 1) * 16)
        for r in reads: e(r)
        if groups < 3:
            e(f"s_add_u32 m0, {sr(S_M0P)}, {groups * 8192}"); e("s_nop 0")
            emit_ring_group(e); groups += 1; issued_after += 4
        elif groups == 3:
            u = uid()
            e(f"s_cmp_lt_u32 {sr(S_W)}, 2")
            e(f"s_cbranch_scc0 L_nok_{u}")
            e(f"s_add_u32 m0, {sr(S_M0P)}, {3 * 8192}"); e("s_nop 0")
            emit_ring_group(e)
            e.label(f"L_nok_{u}")
            groups += 1
        e("s_waitcnt lgkmcnt(0)")
        for ins in valu: e(ins)
    assert groups == 4
    emit_qd_regs(e)
    e(f"s_add_u32 {sr(S_HEADN)}, {sr(S_HEAD)}, 1")
    emit_qo(e, n2, S_HEADN, S_QON)
    e(f"s_sub_u32 {sr(S_SSRC)}, {sr(S_QON)}, 3968")
    e(f"s_sub_u32 {sr(S_SDST)}, {sr(S_STG)}, 3072")
    e(f"s_mov_b32 {sr(S_DS)}, 3968"); e(f"s_mov_b32 {sr(S_XS)}, {128 ^ 3968}")
    e(f"s_mov_b32 {sr(S_DD)}, 3072"); e(f"s_mov_b32 {sr(S_XD)}, {1024 ^ 3072}")
    e("s_waitcnt vmcnt(8)")
    e("s_barrier")
    stamp(e, o, sb + 1)
    for kt in range(2):
        for c in range(4):
            e(f"ds_read_b128 {rK(kt, c)}, {vr(V_AK + (c & 1))} offset:{kt * 4096 + (c >> 1) * 1024}")
    e("s_waitcnt lgkmcnt(0)")
    e("s_barrier")
    e(f"s_mov_b32 m0, {sr(S_M0R)}")
    e("s_nop 0")
    emit_ring_group(e)
    e(f"s_mov_b32 m0, {DUMMY}")
    e("s_nop 0")
    e(f"buffer_load_dwordx4 {vr(V_LANE16)}, {sr(S_QSRD, 4)}, {sr(S_OOB)} offen lds")

def emit_trans(e, n1, n2, o):
    sb1 = 1 if n1 == 5 else 7
    sb2 = 1 if n2 == 5 else 7
    emit_bpart(e, n1, o, True, 1, None)
    e(f"v_add_u32 {vr(V_T1)}, {sr(S_STG)}, {vr(V_AK)}")
    e(f"v_add_u32 {vr(V_T2)}, {sr(S_STG)}, {vr(V_AK + 1)}")
    mf = []
    for t in range(n1):
        mf.append(mfma_str(("L", t), 1))
        for dt in range(8): mf.append(mfma_str(("PV", t, dt), 1))
    R0 = V_S
    reads0, valu0 = qscale_tile(0, o, False, V_T1, V_T2, R0)
    reads1, valu1 = qscale_tile(1, o, True, V_T1, V_T2, R0 + 16)
    for r in reads0: e(r)
    for r in reads1: e(r)
    e("s_waitcnt lgkmcnt(0)")
    merge(e, mf, [(x, None) for x in valu0], 2)
    for ins in valu1: e(ins)
    for t in range(2, n2):
        reads, valu = qscale_tile(t, o, True, V_T1, V_T2, R0 + (t & 1) * 16)
        for r in reads: e(r)
        e("s_waitcnt lgkmcnt(0)")
        for ins in valu: e(ins)
    stamp(e, o, 6)
    fill = []
    for t in range(n1): fill += epi_tile(t, o, True, pk=True)
    for ins in fill: e(ins)
    stamp(e, o, sb1 + 4)
    e(f"s_mov_b32 {sr(S_SSRC)}, {sr(S_QO)}")
    e(f"s_mov_b32 {sr(S_DS)}, 2048"); e(f"s_mov_b32 {sr(S_DD)}, 2176")
    e(f"v_lshrrev_b32 {vr(V_X)}, 4, v0")
    e(f"v_mul_u32_u24 {vr(V_X)}, 272, {vr(V_X)}")
    e(f"v_and_b32 {vr(V_X + 1)}, 15, v0")
    e(f"v_lshl_add_u32 {vr(V_X)}, {vr(V_X + 1)}, 4, {vr(V_X)}")
    e(f"v_add_u32 {vr(V_SA)}, {sr(S_STG)}, {vr(V_X)}")
    e(f"s_mov_b32 m0, {sr(S_M0R)}")
    e(f"s_mov_b32 {sr(S_BLK)}, 1")
    e(f"s_mov_b32 {sr(S_HEAD)}, {sr(S_HEADN)}")
    e(f"s_mov_b32 {sr(S_QO)}, {sr(S_QON)}")
    e("s_waitcnt lgkmcnt(0)")
    stamp(e, o, sb2 + 1)

def emit_final(e, n, o):
    emit_bpart(e, n, o, False, 0, None)
    e(f"v_and_b32 {vr(V_X)}, 15, v0")
    e(f"v_lshlrev_b32 {vr(V_T2)}, 8, {vr(V_X)}")
    e(f"v_bfe_u32 {vr(V_X)}, v0, 4, 1")
    e(f"v_lshl_add_u32 {vr(V_T2)}, {vr(V_X)}, 5, {vr(V_T2)}")
    e(f"v_lshrrev_b32 {vr(V_X)}, 5, v0")
    e(f"v_lshl_add_u32 {vr(V_T2)}, {vr(V_X)}, 4, {vr(V_T2)}")
    mf = []; fill = []
    for t in range(n):
        mf.append(mfma_str(("L", t), 1))
        for dt in range(8): mf.append(mfma_str(("PV", t, dt), 1))
        fill += [(x, len(mf) - 1) for x in epi_tile(t, o, False)]
    merge(e, mf, fill, o.epi_per_gap)
    stamp(e, o, (1 if n == 5 else 7) + 4)

def gen(o):
    global OPT
    OPT = o
    _sched_cache.clear()
    e = Em()
    e.raw(f"; @launch grid=(256,1,1) block=(256,1,1) lds={LDS_BYTES}")
    e.raw('.amdgcn_target "amdgcn-amd-amdhsa--gfx950"')
    e.raw(".text")
    e.raw(f".globl {KNAME}")
    e.raw(".p2align 8")
    e.raw(f".type {KNAME},@function")
    e.label(KNAME)
    e("s_cmp_ge_u32 s2, 256")
    e("s_cbranch_scc1 L_exit")
    e("s_load_dwordx4 s[4:7], s[0:1], 0")
    e("s_load_dwordx4 s[8:11], s[0:1], 16")
    if o.diag: e(f"s_load_dwordx2 {sr(S_WS, 2)}, s[0:1], 40")
    stamp(e, o, 0)
    if o.spin_to:
        e("s_memrealtime s[88:89]"); e("s_memtime s[92:93]")
    if o.diag: e(f"s_memtime {sr(S_STAMP + 28, 2)}")
    e(f"v_lshrrev_b32 {vr(V_T0)}, 6, v0")
    e(f"v_and_b32 v0, 63, v0")
    e("s_nop 0")
    e(f"v_readfirstlane_b32 {sr(S_W)}, {vr(V_T0)}")
    e(f"s_and_b32 {sr(S_T0)}, s2, 7")
    e(f"s_lshr_b32 {sr(S_T1)}, s2, 3")
    e(f"s_and_b32 {sr(S_ROLE)}, {sr(S_T1)}, 1")
    e(f"s_andn2_b32 {sr(S_T1)}, {sr(S_T1)}, 1")
    e(f"s_lshl_b32 {sr(S_T0)}, {sr(S_T0)}, 5")
    e(f"s_add_u32 {sr(S_HEAD)}, {sr(S_T0)}, {sr(S_T1)}")
    e(f"s_mov_b32 {sr(S_BLK)}, 0")
    if o.prof: e("s_mov_b32 s92, 0")
    k = V_T0; g = V_T1; T = V_TMP
    e(f"v_lshrrev_b32 {vr(T)}, 3, v0")
    e(f"v_and_b32 {vr(T + 1)}, 7, v0")
    e(f"v_lshrrev_b32 {vr(T + 2)}, 1, {vr(T)}")
    e(f"v_lshlrev_b32 {vr(T + 3)}, 1, {vr(T + 2)}")
    e(f"s_cmp_lt_u32 {sr(S_W)}, 2")
    e(f"s_cselect_b64 vcc, -1, 0")
    for a1 in range(2):
        e(f"v_add_u32 {vr(T + 4)}, {4 * a1}, {vr(T + 2)}")
        e(f"v_cndmask_b32 {vr(T + 4)}, {vr(T + 3)}, {vr(T + 4)}, vcc")
        e(f"v_xor_b32 {vr(T + 4)}, {vr(T + 4)}, {vr(T + 1)}")
        e(f"v_lshlrev_b32 {vr(T + 4)}, 4, {vr(T + 4)}")
        e(f"v_lshl_add_u32 {vr(T + 4)}, {vr(T)}, 8, {vr(T + 4)}")
        e(f"v_add_u32 {vr(V_DMA + 2 * a1)}, {BIAS}, {vr(T + 4)}")
        e(f"v_mov_b32 {vr(V_DMA + 2 * a1 + 1)}, {vr(T + 4)}")
    e(f"v_and_b32 {vr(k)}, 15, v0")
    e(f"v_lshrrev_b32 {vr(g)}, 4, v0")
    e(f"v_lshlrev_b32 {vr(V_LANE16)}, 4, v0")
    e(f"v_lshrrev_b32 {vr(T)}, 3, {vr(k)}")
    e(f"v_lshlrev_b32 {vr(T)}, 11, {vr(T)}")
    e(f"v_and_b32 {vr(T + 1)}, 7, {vr(k)}")
    e(f"v_lshl_add_u32 {vr(T)}, {vr(T + 1)}, 7, {vr(T)}")
    e(f"v_bfe_u32 {vr(T + 1)}, {vr(k)}, 1, 3")
    for b in range(2):
        e(f"v_add_u32 {vr(T + 2)}, {4 * b}, {vr(g)}")
        e(f"v_xor_b32 {vr(T + 2)}, {vr(T + 2)}, {vr(T + 1)}")
        e(f"v_lshl_add_u32 {vr(V_AK + b)}, {vr(T + 2)}, 4, {vr(T)}")
    e(f"v_mul_u32_u24 {vr(V_OW)}, 272, {vr(k)}")
    e(f"v_lshl_add_u32 {vr(V_OW)}, {vr(g)}, 3, {vr(V_OW)}")
    e(f"v_bfe_u32 {vr(T)}, v0, 2, 2")
    e(f"v_and_b32 {vr(T + 1)}, 1, {vr(g)}")
    e(f"v_lshl_add_u32 {vr(T)}, {vr(T + 1)}, 2, {vr(T)}")
    e(f"v_lshrrev_b32 {vr(T + 1)}, 1, {vr(g)}")
    e(f"v_lshlrev_b32 {vr(T + 1)}, 11, {vr(T + 1)}")
    e(f"v_lshl_add_u32 {vr(T + 1)}, {vr(T)}, 7, {vr(T + 1)}")
    e(f"v_and_b32 {vr(T + 2)}, 1, v0")
    e(f"v_lshl_add_u32 {vr(T + 1)}, {vr(T + 2)}, 3, {vr(T + 1)}")
    e(f"v_add_u32 {vr(T + 1)}, {VREG}, {vr(T + 1)}")
    e(f"v_bfe_u32 {vr(T + 2)}, {vr(T)}, 1, 2")
    e(f"v_lshlrev_b32 {vr(T + 2)}, 1, {vr(T + 2)}")
    e(f"v_bfe_u32 {vr(T + 3)}, v0, 1, 1")
    for b in range(4):
        e(f"v_add_u32 {vr(T + 4)}, {2 * b}, {vr(T + 3)}")
        e(f"v_xor_b32 {vr(T + 4)}, {vr(T + 4)}, {vr(T + 2)}")
        e(f"v_lshl_add_u32 {vr(V_AV + b)}, {vr(T + 4)}, 4, {vr(T + 1)}")
    e(f"s_mov_b32 {sr(S_SCALE2)}, 0x{o.scale_bits:08x}")
    e(f"s_mov_b32 {sr(S_SCALE2 + 1)}, 0x{o.scale_bits:08x}")
    e(f"s_mov_b32 {sr(S_OOB)}, 0x{OOB:x}")
    e(f"v_mov_b32 {vr(T)}, 0x3f803f80")
    for i in range(4): e(f"v_accvgpr_write_b32 {ar(A_ONES + i)}, {vr(T)}")
    e(f"s_mul_i32 {sr(S_STG)}, {sr(S_W)}, {STGW}")
    e(f"s_add_u32 {sr(S_STG)}, {sr(S_STG)}, {STG0}")
    e(f"v_add_u32 {vr(V_OW)}, {sr(S_STG)}, {vr(V_OW)}")
    e("s_waitcnt lgkmcnt(0)")
    e(f"s_mov_b32 s12, s4"); e(f"s_mov_b32 s13, s5"); e(f"s_mov_b32 s14, {Q_BYTES}"); e(f"s_mov_b32 s15, 0x00020000")
    e(f"s_mov_b32 s20, s10"); e(f"s_mov_b32 s21, s11"); e(f"s_mov_b32 s22, {Q_BYTES}"); e(f"s_mov_b32 s23, 0x00020000")
    e(f"s_cmp_lt_u32 {sr(S_W)}, 2")
    e(f"s_cselect_b32 s16, s6, s8")
    e(f"s_cselect_b32 s17, s7, s9")
    e(f"s_sub_u32 s16, s16, {BIAS}")
    e(f"s_subb_u32 s17, s17, 0")
    e(f"s_add_u32 {sr(S_T0)}, {sr(S_HEAD)}, 2")
    e(f"s_mul_i32 s18, {sr(S_T0)}, {HEAD_KV}")
    e(f"s_add_u32 s18, s18, {BIAS}")
    e(f"s_mov_b32 s19, 0x00020000")
    e(f"s_and_b32 {sr(S_T0)}, {sr(S_W)}, 1")
    e(f"s_lshl_b32 {sr(S_T0)}, {sr(S_T0)}, 12")
    e(f"s_mul_i32 {sr(S_OFF0)}, {sr(S_HEAD)}, {HEAD_KV}")
    e(f"s_add_u32 {sr(S_OFF0)}, {sr(S_OFF0)}, {sr(S_T0)}")
    e(f"s_lshr_b32 {sr(S_T1)}, {sr(S_W)}, 1")
    e(f"s_mul_i32 {sr(S_T2)}, {sr(S_T1)}, {VREG}")
    e(f"s_add_u32 {sr(S_M0R)}, {sr(S_T0)}, {sr(S_T2)}")
    e(f"s_mul_i32 {sr(S_T1)}, {sr(S_T1)}, 8192")
    e(f"s_add_u32 {sr(S_M0P)}, {sr(S_M0R)}, {sr(S_T1)}")
    e(f"s_cmp_eq_u32 {sr(S_ROLE)}, 0")
    e("s_cbranch_scc0 L_role1")
    for (n1, n2, r) in ((5, 4, "r0"), (4, 5, "r1")):
        if r == "r1": e.label("L_role1")
        emit_cold(e, n1, o, r)
        emit_tail(e, n1, "q", o, f"{r}a")
        emit_trans(e, n1, n2, o)
        emit_tail(e, n2, "o", o, f"{r}b")
        emit_final(e, n2, o)
        e("s_branch L_done")
    e.label("L_done")
    if o.spin_to:
        e("s_waitcnt vmcnt(0) lgkmcnt(0)")
        if o.spin_mode == "abs":
            e(f"s_add_u32 s88, s88, {o.spin_to}")
        else:
            e("s_memtime s[94:95]"); e("s_memrealtime s[90:91]"); e("s_waitcnt lgkmcnt(0)")
            e("s_sub_u32 s94, s94, s92")
            e(f"s_lshr_b32 s94, s94, {o.spin_to}")
            e("s_add_u32 s88, s90, s94")
        e.label("L_spin")
        e("s_memrealtime s[90:91]"); e("s_waitcnt lgkmcnt(0)")
        e("s_sub_u32 s91, s90, s88")
        e("s_cmp_lt_i32 s91, 0")
        e("s_cbranch_scc1 L_spin")
    if o.diag:
        e("s_waitcnt vmcnt(0) lgkmcnt(0)")
        stamp(e, o, 13)
        e(f"s_memtime {sr(S_STAMP + 30, 2)}")
        e("s_waitcnt lgkmcnt(0)")
        e(f"s_lshl_b32 {sr(S_T0)}, s2, 2")
        e(f"s_add_u32 {sr(S_T0)}, {sr(S_T0)}, {sr(S_W)}")
        e(f"s_lshl_b32 {sr(S_T0)}, {sr(S_T0)}, 7")
        e(f"s_mov_b32 s4, {sr(S_WS)}"); e(f"s_mov_b32 s5, {sr(S_WS + 1)}"); e("s_mov_b32 s6, 0x200000"); e("s_mov_b32 s7, 0x00020000")
        if o.prof:
            e(f"v_lshlrev_b32 v2, 2, v0")
            e(f"s_lshl_b32 s93, {sr(S_T0)}, 1")
            e(f"s_add_u32 s93, s93, 0x20000")
            e(f"v_add_u32 v2, s93, v2")
            e(f"buffer_store_dword v1, v2, s[4:7], 0 offen")
            e("s_waitcnt vmcnt(0)")
        for i in range(32): e(f"v_writelane_b32 v1, {sr(S_STAMP + i)}, {i}") if i else e(f"v_mov_b32 v1, {sr(S_STAMP)}")
        e(f"v_lshlrev_b32 v2, 2, v0")
        e(f"v_add_u32 v2, {sr(S_T0)}, v2")
        e("v_cmp_gt_u32 vcc, 32, v0")
        e("s_and_saveexec_b64 s[86:87], vcc")
        e("buffer_store_dword v1, v2, s[4:7], 0 offen")
        e("s_waitcnt vmcnt(0)")
    e.label("L_exit")
    e("s_endpgm")
    e.raw('.section .rodata,"a"')
    e.raw(".p2align 6")
    e.raw(f".amdhsa_kernel {KNAME}")
    e.raw("  .amdhsa_next_free_vgpr 512")
    e.raw("  .amdhsa_next_free_sgpr 96")
    e.raw("  .amdhsa_accum_offset 256")
    e.raw("  .amdhsa_group_segment_fixed_size 0")
    e.raw("  .amdhsa_kernarg_size 48")
    e.raw("  .amdhsa_user_sgpr_count 2")
    e.raw("  .amdhsa_user_sgpr_kernarg_segment_ptr 1")
    e.raw("  .amdhsa_system_sgpr_workgroup_id_x 1")
    e.raw(".end_amdhsa_kernel")
    return e.text()

def default_opt():
    import struct, math
    o = Opt()
    o.pv_order = 'dt'; o.lat_exp = 3; o.ephase = 0; o.m_back = 0; o.v_start = 0; o.lat_ds = 6; o.dma_step = 3
    o.diag = False; o.diag_cyc = False
    o.epi_per_gap = 2; o.q_first = 5; o.prof = False; o.spin_to = 0; o.spin_mode = "abs"; o.x_nobar = False; o.x_nodma = False; o.x_novm = False
    o.kv_pol = "nt"; o.q_pol = "nt"; o.o_pol = ""
    o.scale_bits = struct.unpack("<I", struct.pack("<f", (128 ** -0.5) * math.log2(math.e)))[0]
    return o

if __name__ == "__main__":
    ap = argparse.ArgumentParser()
    ap.add_argument("out")
    ap.add_argument("--diag", action="store_true")
    ap.add_argument("--cyc", action="store_true")
    ap.add_argument("--set", action="append", default=[])
    a = ap.parse_args()
    o = default_opt()
    o.diag = a.diag; o.diag_cyc = a.cyc
    for kv in a.set:
        k, v = kv.split("=")
        setattr(o, k, eval(v))
    open(a.out, "w").write(gen(o))
```

```python
import sys, argparse

KNAME = "standalone__mha_softmax__near_ridge_kernel"
NHEAD = 256; SQ = 576; SK = 1024; D = 128
Q_BYTES = NHEAD * SQ * D * 2
HEAD_KV = SK * D * 2
HEAD_Q = SQ * D * 2
BIAS = 896
VREG = 32768
STG0 = 65536
STGW = 21760
DUMMY = STG0 + 4 * STGW
LDS_BYTES = DUMMY + 3072
OPITCH = 4352

S_QSRD = 12; S_KVSRD = 16; S_OSRD = 20
S_W = 24; S_OFF = 25; S_CNT = 26; S_END = 27; S_BLK = 28; S_HEAD = 29; S_QO = 30; S_QON = 31
S_M0R = 32; S_STG = 33; S_SSRC = 34; S_SDST = 35; S_DS = 36; S_DD = 37; S_XS = 38; S_XD = 39
S_T0 = 40; S_T1 = 41; S_T2 = 42; S_T3 = 43; S_SCALE2 = 44; S_OFF0 = 46; S_M0P = 47
S_STAMP = 48
S_WS = 80
S_ROLE = 82; S_OOB = 83; S_THR = 84; S_HEADN = 85; S_SAVE = 86
OOB = 0x7ff00000
V_T0 = 1; V_T1 = 2; V_T2 = 3; V_IDX = 1; V_PROF = 121
V_AK = 4
V_AV = 6
V_DMA = 10
V_LANE16 = 14
V_OW = 15
V_NEGM = 16
V_S = 36
V_P = 76
V_TMP = 116
V_SD = 116
V_SA = 120
V_QD = 122
V_X = 124
V_O = 128
A_Q = 0; A_K = 80; A_V = 112; A_L = 144; A_ONES = 164; A_O4 = 168

def vr(b, n=1): return f"v{b}" if n == 1 else f"v[{b}:{b+n-1}]"
def ar(b, n=1): return f"a{b}" if n == 1 else f"a[{b}:{b+n-1}]"
def sr(b, n=1): return f"s{b}" if n == 1 else f"s[{b}:{b+n-1}]"
def rS(t, kt, r=None):
    b = V_S + t * 8 + kt * 4
    return vr(b, 4) if r is None else vr(b + r)
def rP(par, t, j=None):
    b = V_P + t * 8 + par * 4
    return vr(b, 4) if j is None else vr(b + j)
def rNEGM(t): return vr(V_NEGM + 4 * t, 4)
def rO(t, dt, r=None):
    if t < 4:
        b = V_O + t * 32 + dt * 4
        return vr(b, 4) if r is None else vr(b + r)
    b = A_O4 + dt * 4
    return ar(b, 4) if r is None else ar(b + r)
def rQ(t, c): return ar(A_Q + t * 16 + c * 4, 4)
def rK(kt, c): return ar(A_K + (kt * 4 + c) * 4, 4)
def rV(dt, h=None):
    b = A_V + dt * 4
    return ar(b, 4) if h is None else ar(b + 2 * h, 2)
def rL(t): return ar(A_L + 4 * t, 4)

class Opt: pass
OPT = None

class Em:
    def __init__(self): self.l = []
    def __call__(self, s): self.l.append("  " + s)
    def label(self, s): self.l.append(s + ":")
    def raw(self, s): self.l.append(s)
    def text(self): return "\n".join(self.l) + "\n"

def half_list(n, par, o):
    L = []
    for t in range(n):
        if par == 1: L.append(("SM", t, par))
        for kt in range(2):
            for c in range(4): L.append(("QK", t, kt, c, par))
    if o.pv_order == "dt":
        for dt in range(8):
            for t in range(n): L.append(("PV", t, dt, par))
    else:
        for t in range(n):
            for dt in range(8): L.append(("PV", t, dt, par))
    return L

_sched_cache = {}
def build_schedule(n, side, o):
    key = (n, side)
    if key in _sched_cache: return _sched_cache[key]
    h1 = half_list(n, 1, o); h0 = half_list(n, 0, o)
    mf = h1 + h0
    G1 = len(h1); G = len(mf)
    base = {1: 0, 0: G1}
    end = {1: G1, 0: G}
    idx = {m: i for i, m in enumerate(mf)}
    nE = 16 * n
    isE = [False] * G
    for k in range(nE): isE[(int(k * G / nE) + o.ephase) % G] = True
    assert sum(isE) == nE and not isE[G - 1], "ephase"
    gaps = [[] for _ in range(G)]
    cap = [0 if isE[g] else 2 for g in range(G)]
    order = [(idx[("QK", t, kt, 3, par)] + o.lat_exp, t, kt, par) for par in (1, 0) for t in range(n) for kt in range(2)]
    Elist = [g for g in range(G) if isE[g]]
    seq = [(rdy, t, kt, r, par) for (rdy, t, kt, par) in order for r in range(4)]
    exp_pos = None
    for k0 in range(nE):
        cand = {}
        ok = True
        for i, (rdy, t, kt, r, par) in enumerate(seq):
            kk = k0 + i
            pos = Elist[kk % nE] + G * (kk // nE)
            nxt = idx[("QK", t, kt, 0, 0)] if par == 1 else G + idx[("QK", t, kt, 0, 1)]
            if pos < rdy or pos >= nxt - 2: ok = False; break
            cand[(t, kt, r, par)] = pos
        if ok and k0 >= o.exp_k0:
            exp_pos = cand; break
    assert exp_pos is not None, "no feasible exp placement"
    for (t, kt, r, par), pos in exp_pos.items():
        gaps[pos % G].append(dict(k="exp", t=t, kt=kt, r=r, src=par, pos=pos, old=(pos >= G)))
    assert all(len(gaps[g]) == 1 for g in range(G) if isE[g])
    VALU = ("cvt", "vxor", "vadd")
    DS = ("dsK", "dsV", "dsS")
    def place(item, lo, hi, alone=False, rev=False):
        rng = range(lo, hi + 1) if not rev else range(hi, lo - 1, -1)
        for p in rng:
            g = p % G
            if isE[g]: continue
            if alone:
                if cap[g] == 2:
                    cap[g] = 0; gaps[g].append(item); item["pos"] = p; return p
                continue
            if cap[g] == 0: continue
            cap[g] -= 1
            if item["k"] not in VALU and item["k"] != "kwait" and any(x["k"] in VALU for x in gaps[g]): gaps[g].insert(0, item)
            else: gaps[g].append(item)
            item["pos"] = p
            return p
        raise RuntimeError(f"n={n} side={side}: cannot place {item} in [{lo},{hi}]")
    cap[G - 1] = 0; gaps[G - 1].append(dict(k="ctl", par=0))
    for (rdy, t, kt, par) in order:
        for jj in range(2):
            p = exp_pos[(t, kt, 2 * jj + 1, par)]
            it = dict(k="cvt", t=t, j=kt * 2 + jj, src=par)
            pp = place(it, p + 1, p + 10)
            it["old"] = pp >= G
            nxt = idx[("QK", t, kt, 0, 0)] if par == 1 else G + idx[("QK", t, kt, 0, 1)]
            assert pp < nxt
            if par == 1: fu = min(i for i, m in enumerate(mf) if m[0] == "PV" and m[1] == t and m[3] == 0)
            else: fu = G + idx[("SM", t, 1)]
            assert pp + 1 < fu, ("cvt deadline", t, kt, par, pp, fu)
            lo_ok = idx[("SM", t, 1)] if par == 1 else 0
            assert pp > lo_ok
    info = {}
    for par in (1, 0):
        B, E = base[par], end[par]
        last = E - 2 if par == 0 else E - 1
        firstPV = min(i for i, m in enumerate(mf) if m[0] == "PV" and m[3] == par)
        lastQK = max(i for i, m in enumerate(mf) if m[0] == "QK" and m[4] == par)
        mpos = None
        for p in range(firstPV - 1 - o.m_back, firstPV - 12, -1):
            if not isE[p] and cap[p] == 2:
                cap[p] = 0; gaps[p] += [dict(k="mwait", par=par), dict(k="bar", par=par)]; mpos = p; break
        assert mpos is not None
        p = B + o.v_start
        if side == "o": psS = place(dict(k="dsS", par=par), p, mpos - o.lat_ds)
        for dt in range(8):
            for h in range(2):
                p = max(p, place(dict(k="dsV", dt=dt, h=h, par=par), p, mpos - o.lat_ds))
        lastdsV = p
        lastK = {(kt, c): max(i for i, m in enumerate(mf) if m[0] == "QK" and m[2] == kt and m[3] == c and m[4] == par) for kt in range(2) for c in range(4)}
        pm0 = place(dict(k="m0", par=par), mpos + 1, last)
        p = pm0 + 1
        kp = mpos + 1
        kl = [(kt, c) for kt in range(2) for c in range(4)]
        for b in range(4):
            lastdma = place(dict(k="dma", b=b, par=par), p, last, alone=True)
            p = lastdma + o.dma_step
            for _ in range(2):
                kt, c = kl.pop(0)
                kp = place(dict(k="dsK", kt=kt, c=c, par=par), max(kp, lastK[(kt, c)]), last - o.lat_ds)
        place(dict(k="kwait", par=par), kp + o.lat_ds, last, rev=True)
        place(dict(k="soff", par=par), lastdma + 1, last)
        if side == "q":
            if par == 0: place(dict(k="m0tog", par=par), pm0 + 1, last)
            pm = place(dict(k="sm0", par=par), lastdma + 1, last - 1)
            place(dict(k="sdma", par=par), pm + 1, last, alone=True)
            if par == 1:
                q0 = place(dict(k="supd", i=0, par=par), B, pm - 1)
                q1 = place(dict(k="supd", i=1, par=par), B, pm - 1)
                place(dict(k="supd", i=2, par=par), q0 + 1, G - 2)
                place(dict(k="supd", i=3, par=par), q1 + 1, G - 2)
        elif side == "o":
            ps = place(dict(k="sst", par=par), mpos + 1, last, alone=True)
            if par == 0:
                place(dict(k="supd", i=0, par=par), ps + 1, last)
                place(dict(k="vadd", par=par), psS + 1, last)
        if par == 0:
            for i in range(4): place(dict(k="vxor", reg=V_AV + i, par=par), lastdsV + 1, last)
        else:
            for i in range(2): place(dict(k="vxor", reg=V_AK + i, par=par), kp + 1, last)
        info[par] = dict(mpos=mpos)
    _sched_cache[key] = (mf, gaps, cap, G1)
    return mf, gaps, cap, G1

def describe(n, side, o):
    mf, gaps, cap, G1 = build_schedule(n, side, o)
    for g, m in enumerate(mf):
        print(g, m, [(x["k"], x.get("t", ""), x.get("dt", x.get("kt", x.get("j", x.get("b", x.get("i", "")))))) for x in gaps[g]], "free", cap[g])
    print("free slots:", sum(cap))

def mfma_str(m, zeroC=False):
    if m[0] == "QK":
        _, t, kt, c, par = m
        C = rNEGM(t) if c == 0 else rS(t, kt)
        return f"v_mfma_f32_16x16x32_bf16 {rS(t, kt)}, {rK(kt, c)}, {rQ(t, c)}, {C}"
    if m[0] == "SM":
        t = m[1]
        return f"v_smfmac_f32_16x16x64_bf16 {rL(t)}, {ar(A_ONES, 4)}, {vr(V_P + 8 * t, 8)}, {vr(V_IDX)}"
    _, t, dt, par = m
    return f"v_mfma_f32_16x16x32_bf16 {rO(t, dt)}, {rV(dt)}, {rP(par, t)}, {'0' if zeroC else rO(t, dt)}"

def dma_str(b):
    return f"buffer_load_dwordx4 {vr(V_DMA + b)}, {sr(S_KVSRD, 4)}, {sr(S_OFF)} offen offset:{b * 1024} {OPT.kv_pol} lds"

def exp_str(x):
    rr = rS(x["t"], x["kt"], x["r"]); return f"v_exp_f32 {rr}, {rr}"
def cvt_str(x):
    t, j = x["t"], x["j"]; kt, jj = j >> 1, j & 1
    pb = x["src"] ^ 1
    return f"v_cvt_pk_bf16_f32 {rP(pb, t, j)}, {rS(t, kt, 2*jj)}, {rS(t, kt, 2*jj+1)}"

def emit_range(e, n, side, o, mode, vmn=None):
    mf, gaps, cap, G1 = build_schedule(n, side, o)
    G = len(mf)
    rng = {"pass": range(0, G), "it0": range(G1, G), "A": range(0, G1)}[mode]
    first = mode == "it0"; A = mode == "A"
    nside = 1 if side else 0
    if vmn is None: vmn = 2 * (4 + nside)
    for g in rng:
        m = mf[g]
        if not (A and m[0] != "QK"): e(mfma_str(m, zeroC=first))
        for x in gaps[g]:
            k = x["k"]
            par = x.get("par")
            if k == "exp":
                if A and x["src"] == 0: continue
                e(exp_str(x))
            elif k == "cvt":
                if A and x["src"] == 0: continue
                if A and m[0] != "QK": e("s_nop 0")
                e(cvt_str(x))
            elif k == "dsV":
                if A: continue
                dt, h = x["dt"], x["h"]
                e(f"ds_read_b64_tr_b16 {rV(dt, h)}, {vr(V_AV + (dt & 3))} offset:{((par + 1) & 1) * 8192 + h * 4096 + (dt >> 2) * 1024}")
            elif k == "dsS":
                if A or first: continue
                e(f"ds_read_b128 {vr(V_SD, 4)}, {vr(V_SA)} offset:{0 if par == 1 else 1088}")
            elif k == "dsK":
                kt, c = x["kt"], x["c"]
                e(f"ds_read_b128 {rK(kt, c)}, {vr(V_AK + (c & 1))} offset:{par * 8192 + kt * 4096 + (c >> 1) * 1024}")
            elif k == "kwait":
                e("s_waitcnt lgkmcnt(0)")
            elif k == "mwait":
                if A: continue
                e(f"s_waitcnt vmcnt({vmn}) lgkmcnt(0)" if not OPT.x_novm else "s_waitcnt lgkmcnt(0)")
            elif k == "bar":
                if A: continue
                if not OPT.x_nobar: e("s_barrier")
            elif k == "m0":
                if A: continue
                if side == "q":
                    if par == 0: e(f"s_xor_b32 m0, {sr(S_M0R)}, 0x2000")
                    else: e(f"s_mov_b32 m0, {sr(S_M0R)}")
                else:
                    e(f"s_xor_b32 m0, m0, 0x{0x2000 if par == 0 else 0x6000:x}")
            elif k == "m0tog":
                e(f"s_xor_b32 {sr(S_M0R)}, {sr(S_M0R)}, 0x4000")
            elif k == "dma":
                if A: continue
                if not OPT.x_nodma: e(dma_str(x["b"]))
            elif k == "soff":
                if A: continue
                e(f"s_add_u32 {sr(S_OFF)}, {sr(S_OFF)}, 8192")
            elif k == "sm0":
                if A: continue
                e(f"s_mov_b32 m0, {DUMMY if first else sr(S_SDST)}")
            elif k == "sdma":
                if A: continue
                a1 = 0 if par == 1 else 1
                e(f"buffer_load_dwordx4 {vr(V_QD + a1)}, {sr(S_QSRD, 4)}, {sr(S_OOB if first else S_SSRC)} offen offset:{a1 * 2048} {OPT.q_pol} lds")
            elif k == "sst":
                if A: continue
                e(f"buffer_store_dwordx4 {vr(V_SD, 4)}, {vr(V_LANE16)}, {sr(S_OSRD, 4)}, {sr(S_OOB if first else S_SSRC)} offen offset:{0 if par == 1 else 1024} {OPT.o_pol}")
            elif k == "supd":
                if A or first: continue
                i = x["i"]
                if side == "q":
                    e([f"s_add_u32 {sr(S_SSRC)}, {sr(S_SSRC)}, {sr(S_DS)}", f"s_add_u32 {sr(S_SDST)}, {sr(S_SDST)}, {sr(S_DD)}",
                       f"s_xor_b32 {sr(S_DS)}, {sr(S_DS)}, {sr(S_XS)}", f"s_xor_b32 {sr(S_DD)}, {sr(S_DD)}, {sr(S_XD)}"][i])
                else:
                    e(f"s_add_u32 {sr(S_SSRC)}, {sr(S_SSRC)}, {sr(S_DS)}")
            elif k == "vadd":
                if A or first: continue
                e(f"v_add_u32 {vr(V_SA)}, {sr(S_DD)}, {vr(V_SA)}")
            elif k == "vxor":
                e(f"v_xor_b32 {vr(x['reg'])}, 0x4000, {vr(x['reg'])}")
            elif k == "ctl":
                pass
            else:
                raise ValueError(k)

def old_items(n, side, o):
    mf, gaps, cap, G1 = build_schedule(n, side, o)
    ex = [x for g in range(G1) for x in gaps[g] if x["k"] == "exp" and x["src"] == 0]
    cv = [x for g in range(G1) for x in gaps[g] if x["k"] == "cvt" and x["src"] == 0]
    return ex, cv

def stamp(e, o, i):
    if not o.diag: return
    if o.diag_cyc: e(f"s_memtime {sr(S_STAMP + 2 * i, 2)}")
    else: e(f"s_memrealtime {sr(S_STAMP + 2 * i, 2)}")

_uid = [0]
def uid():
    _uid[0] += 1
    return _uid[0]

def emit_ring_group(e):
    for b in range(4): e(dma_str(b))
    e(f"s_add_u32 {sr(S_OFF)}, {sr(S_OFF)}, 8192")

def emit_qo(e, n, head_sreg, dst):
    rowbase = 0 if n == 5 else 320
    e(f"s_mul_i32 {sr(dst)}, {sr(head_sreg)}, {HEAD_Q}")
    e(f"s_mul_i32 {sr(S_T0)}, {sr(S_W)}, {16 * n * 256}")
    e(f"s_add_u32 {sr(dst)}, {sr(dst)}, {sr(S_T0)}")
    e(f"s_add_u32 {sr(dst)}, {sr(dst)}, {rowbase * 256}")

def emit_qd_regs(e):
    T = V_X
    e(f"v_lshrrev_b32 {vr(T)}, 3, v0")
    e(f"v_and_b32 {vr(T + 1)}, 7, v0")
    e(f"v_lshrrev_b32 {vr(T + 2)}, 1, {vr(T)}")
    for a1 in range(2):
        e(f"v_add_u32 {vr(T + 3)}, {4 * a1}, {vr(T + 2)}")
        e(f"v_xor_b32 {vr(T + 3)}, {vr(T + 3)}, {vr(T + 1)}")
        e(f"v_lshlrev_b32 {vr(T + 3)}, 4, {vr(T + 3)}")
        e(f"v_lshl_add_u32 {vr(V_QD + a1)}, {vr(T)}, 8, {vr(T + 3)}")

def emit_q_dma_tile(e, t):
    for hh in range(2):
        e(f"s_add_u32 m0, {sr(S_STG)}, {t * 4096 + hh * 1024}")
        e(f"s_add_u32 {sr(S_T2)}, {sr(S_QO)}, {t * 4096 + hh * 128}")
        for a1 in range(2):
            e(f"buffer_load_dwordx4 {vr(V_QD + a1)}, {sr(S_QSRD, 4)}, {sr(S_T2)} offen offset:{a1 * 2048} {OPT.q_pol} lds")

def qscale_tile(t, o, pk, AQ0, AQ1, R):
    reads = [f"ds_read_b128 {vr(R + 4 * c, 4)}, {vr(AQ0 if (c & 1) == 0 else AQ1)} offset:{t * 4096 + (c >> 1) * 1024}" for c in range(4)]
    chains = []
    for i in range(16):
        src = R + i
        t0 = V_TMP + (i % 4) * 2
        ch = [f"v_lshlrev_b32 {vr(t0)}, 16, {vr(src)}", f"v_and_b32 {vr(t0 + 1)}, 0xffff0000, {vr(src)}"]
        if pk: ch.append(f"v_pk_mul_f32 {vr(t0, 2)}, {vr(t0, 2)}, {sr(S_SCALE2, 2)}")
        else: ch += [f"v_mul_f32 {vr(t0)}, {sr(S_SCALE2)}, {vr(t0)}", f"v_mul_f32 {vr(t0 + 1)}, {sr(S_SCALE2)}, {vr(t0 + 1)}"]
        ch += [f"v_cvt_pk_bf16_f32 {vr(t0)}, {vr(t0)}, {vr(t0 + 1)}", f"v_accvgpr_write_b32 {ar(A_Q + t * 16 + i)}, {vr(t0)}"]
        chains.append(ch)
    out = []
    for g in range(4):
        ch = chains[4 * g:4 * g + 4]
        for s in range(len(ch[0])):
            for j in range(4): out.append(ch[j][s])
    return reads, out

def mpass_mfmas(tiles):
    L = []
    for t in tiles:
        for c in range(4):
            C = "0" if c == 0 else rS(t, 0)
            L.append(f"v_mfma_f32_16x16x32_bf16 {rS(t, 0)}, {rK(0, c)}, {rQ(t, c)}, {C}")
    return L

def mpass_valu(tiles):
    X = lambda t: V_X + 2 * (t & 1) if len(tiles) <= 2 else V_P + 8 * t + 4
    Y = lambda t: X(t) + 1
    L = []
    for t in tiles: L.append(f"v_max3_f32 {vr(X(t))}, {rS(t, 0, 0)}, {rS(t, 0, 1)}, {rS(t, 0, 2)}")
    for t in tiles: L.append(f"v_max_f32 {vr(X(t))}, {vr(X(t))}, {rS(t, 0, 3)}")
    for t in tiles: L.append(f"v_mov_b32 {vr(Y(t))}, {vr(X(t))}")
    L.append("s_nop 1")
    for t in tiles: L.append(f"v_permlane32_swap_b32 {vr(X(t))}, {vr(Y(t))}")
    L.append("s_nop 1")
    for t in tiles: L.append(f"v_max_f32 {vr(X(t))}, {vr(X(t))}, {vr(Y(t))}")
    for t in tiles: L.append(f"v_mov_b32 {vr(Y(t))}, {vr(X(t))}")
    L.append("s_nop 1")
    for t in tiles: L.append(f"v_permlane16_swap_b32 {vr(X(t))}, {vr(Y(t))}")
    L.append("s_nop 1")
    for t in tiles: L.append(f"v_max_f32 {vr(X(t))}, {vr(X(t))}, {vr(Y(t))}")
    for t in tiles:
        for i in range(4): L.append(f"v_sub_f32 {vr(V_NEGM + 4 * t + i)}, 0, {vr(X(t))}")
    L.append("s_nop 1")
    return L

def epi_tile(t, o, to_lds, pk=False):
    L = []
    R = V_X + 3
    L.append(f"v_accvgpr_read_b32 {vr(R)}, {ar(A_L + 4 * t)}")
    L.append(f"v_accvgpr_read_b32 {vr(R - 1)}, {ar(A_L + 4 * t + 1)}")
    if not to_lds: L.append(f"s_add_u32 {sr(S_T1)}, {sr(S_QO)}, {t * 4096}")
    L.append(f"v_add_f32 {vr(R)}, {vr(R)}, {vr(R - 1)}")
    L.append(f"v_rcp_f32 {vr(R)}, {vr(R)}")
    L.append("s_nop 0")
    if pk: L.append(f"v_mov_b32 {vr(R - 1)}, {vr(R)}")
    for dp in range(4):
        B = V_S + ((t * 4 + dp) % 4) * 4
        for half in range(2):
            dt = 2 * dp + half
            T = V_TMP + half * 4
            if t >= 4:
                for r in range(4): L.append(f"v_accvgpr_read_b32 {vr(T + r)}, {rO(t, dt, r)}")
                src = lambda r: vr(T + r); src2 = lambda r: vr(T + r, 2)
            else:
                b0 = V_O + t * 32 + dt * 4
                src = lambda r: vr(b0 + r); src2 = lambda r: vr(b0 + r, 2)
            if pk:
                for r in (0, 2): L.append(f"v_pk_mul_f32 {vr(T + r, 2)}, {src2(r)}, {vr(R - 1, 2)}")
            else:
                for r in range(4): L.append(f"v_mul_f32 {vr(T + r)}, {src(r)}, {vr(R)}")
            L.append(f"v_cvt_pk_bf16_f32 {vr(B + 2 * half)}, {vr(T)}, {vr(T + 1)}")
            L.append(f"v_cvt_pk_bf16_f32 {vr(B + 2 * half + 1)}, {vr(T + 2)}, {vr(T + 3)}")
            if to_lds:
                L.append(f"ds_write_b64 {vr(V_OW)}, {vr(B + 2 * half, 2)} offset:{t * OPITCH + dt * 32}")
        if not to_lds:
            L.append("s_nop 1")
            L.append(f"v_permlane16_swap_b32 {vr(B)}, {vr(B + 2)}")
            L.append(f"v_permlane16_swap_b32 {vr(B + 1)}, {vr(B + 3)}")
            L.append(f"buffer_store_dwordx4 {vr(B, 4)}, {vr(V_T2)}, {sr(S_OSRD, 4)}, {sr(S_T1)} offen offset:{dp * 64} {OPT.o_pol}")
    return L

def emit_bpart(e, n, o, with_stream):
    side = "q" if with_stream else "o"
    ex, cv = old_items(n, side, o)
    for x in ex: e(exp_str(x))
    for dt in range(8):
        for h in range(2):
            e(f"ds_read_b64_tr_b16 {rV(dt, h)}, {vr(V_AV + (dt & 3))} offset:{h * 4096 + (dt >> 2) * 1024}")
    for x in cv: e(cvt_str(x))
    if with_stream:
        e(f"s_waitcnt vmcnt(10) lgkmcnt(0)")
        e("s_barrier")
        e(f"s_mov_b32 m0, {sr(S_M0R)}")
        e("s_nop 0")
        emit_ring_group(e)
        e(f"s_mov_b32 m0, {DUMMY}")
        e("s_nop 0")
        e(f"buffer_load_dwordx4 {vr(V_LANE16)}, {sr(S_QSRD, 4)}, {sr(S_OOB)} offen lds")
    else:
        e("s_waitcnt lgkmcnt(0)")
    e("s_nop 0")

def bpart_mfmas(n):
    mf = []; last = []
    for t in range(n):
        mf.append(mfma_str(("SM", t, 1)))
        for dt in range(8): mf.append(mfma_str(("PV", t, dt, 1)))
        last.append(len(mf) - 1)
    return mf, last

def merge(e, mf, fill, per_gap, lag=3):
    i = 0
    for j, m in enumerate(mf):
        e(m)
        k = 0
        while i < len(fill) and k < per_gap:
            ins, dep = fill[i]
            if dep is not None and j < dep + lag - 1: break
            e(ins); i += 1; k += 1
    if i < len(fill) and any(d is not None for _, d in fill[i:]):
        e("s_nop 7"); e("s_nop 1")
    while i < len(fill):
        e(fill[i][0]); i += 1

def emit_lzero(e, n):
    for i in range(4 * n): e(f"v_accvgpr_write_b32 {ar(A_L + i)}, 0")

def x_items_tile(n, side, o, t):
    mf, gaps, cap, G1 = build_schedule(n, side, o)
    ex = sorted([x for g in range(G1) for x in gaps[g] if x["k"] == "exp" and x["src"] == 1 and x["t"] == t], key=lambda x: x["pos"])
    cv = sorted([x for g in range(G1) for x in gaps[g] if x["k"] == "cvt" and x["src"] == 1 and x["t"] == t], key=lambda x: x["pos"])
    return ex, cv

def emit_tile_prologue(e, n, side, o, t):
    e("s_nop 1")
    for m in mpass_mfmas([t]): e(m)
    e("s_nop 7"); e("s_nop 1")
    for ins in mpass_valu([t]): e(ins)
    for kt in range(2):
        for c in range(4): e(mfma_str(("QK", t, kt, c, 1)))
    ex, cv = x_items_tile(n, side, o, t)
    if ex and any(x["kt"] == 1 for x in ex[:4]): pass
    e("s_nop 3")
    n0 = sum(1 for x in ex if x["kt"] == 0)
    for i, x in enumerate(ex):
        if x["kt"] == 1 and i == n0 and n0 < 4: e("s_nop 7")
        e(exp_str(x))
    e("s_nop 0")
    for x in cv: e(cvt_str(x))

def emit_kread(e, imm):
    for kt in range(2):
        for c in range(4):
            e(f"ds_read_b128 {rK(kt, c)}, {vr(V_AK + (c & 1))} offset:{imm + kt * 4096 + (c >> 1) * 1024}")

def emit_loop(e, n, side, o, name):
    sb = 1 if n == 5 else 7
    stamp(e, o, sb + 2)
    n_other = 9 - n
    e(f"s_add_u32 {sr(S_CNT)}, {sr(S_OFF)}, {(4 * n_other + 1) * 8192}")
    e(f"s_add_u32 {sr(S_END)}, {sr(S_OFF)}, {31 * 8192}")
    emit_range(e, n, side, o, "it0", vmn=(9 if side == "q" else 10))
    e.label(f"L_odd_{name}")
    emit_range(e, n, side, o, "pass")
    if o.prof:
        e("s_memtime s[88:89]"); e("s_memrealtime s[90:91]"); e("s_waitcnt lgkmcnt(0)")
        e("s_lshl_b64 exec, 1, s92"); e("s_add_u32 s93, s92, 32"); e(f"v_mov_b32 {vr(V_PROF)}, s88"); e("s_lshl_b64 exec, 1, s93"); e("s_add_u32 s92, s92, 1"); e(f"v_mov_b32 {vr(V_PROF)}, s90"); e("s_mov_b64 exec, -1"); e("s_nop 4")
    e(f"s_cmp_eq_u32 {sr(S_OFF)}, {sr(S_CNT)}")
    e(f"s_cbranch_scc0 L_odd_{name}")
    e(f"s_cmp_eq_u32 {sr(S_CNT)}, {sr(S_END)}")
    e(f"s_cbranch_scc1 L_exit_{name}")
    e(f"s_mov_b32 {sr(S_CNT)}, {sr(S_END)}")
    e(f"s_mov_b32 {sr(S_SSRC)}, {sr(S_OOB)}")
    e(f"s_mov_b32 {sr(S_DS)}, 0")
    e(f"s_mov_b32 {sr(S_DD)}, 0")
    if side == "q":
        e(f"s_mov_b32 {sr(S_SDST)}, {DUMMY}")
        e(f"s_mov_b32 {sr(S_XS)}, 0")
        e(f"s_mov_b32 {sr(S_XD)}, 0")
    e(f"s_branch L_odd_{name}")
    e.label(f"L_exit_{name}")
    stamp(e, o, sb + 3)

def emit_cold(e, n, o, name):
    sb = 1 if n == 5 else 7
    n2 = 9 - n
    emit_qo(e, n, S_HEAD, S_QO)
    emit_qd_regs(e)
    e(f"s_mov_b32 {sr(S_OFF)}, {sr(S_OFF0)}")
    e(f"s_mov_b32 m0, {sr(S_M0P)}")
    e("s_nop 0")
    emit_ring_group(e)
    for t in range(n): emit_q_dma_tile(e, t)
    e(f"s_add_u32 m0, {sr(S_M0P)}, 8192"); e("s_nop 0")
    emit_ring_group(e)
    stamp(e, o, sb)
    e(f"v_add_u32 {vr(V_T1)}, {sr(S_STG)}, {vr(V_AK)}")
    e(f"v_add_u32 {vr(V_T2)}, {sr(S_STG)}, {vr(V_AK + 1)}")
    emit_lzero(e, n)
    e(f"s_add_u32 {sr(S_HEADN)}, {sr(S_HEAD)}, 1")
    emit_qo(e, n2, S_HEADN, S_QON)
    e(f"s_sub_u32 {sr(S_SSRC)}, {sr(S_QON)}, 3968")
    e(f"s_sub_u32 {sr(S_SDST)}, {sr(S_STG)}, 3072")
    e(f"s_mov_b32 {sr(S_DS)}, 3968"); e(f"s_mov_b32 {sr(S_XS)}, {128 ^ 3968}")
    e(f"s_mov_b32 {sr(S_DD)}, 3072"); e(f"s_mov_b32 {sr(S_XD)}, {1024 ^ 3072}")
    e(f"s_waitcnt vmcnt({4 * n + 4})")
    e("s_barrier")
    emit_kread(e, 0)
    issued_after = 4
    groups = 2
    for t in range(n):
        e(f"s_waitcnt vmcnt({4 * (n - 1 - t) + issued_after})")
        R = V_O + (t & 1) * 16
        reads, valu = qscale_tile(t, o, True, V_T1, V_T2, R)
        for r in reads: e(r)
        if groups < 3:
            e(f"s_add_u32 m0, {sr(S_M0P)}, {groups * 8192}"); e("s_nop 0")
            emit_ring_group(e); groups += 1; issued_after += 4
        elif groups == 3:
            u = uid()
            e(f"s_cmp_lt_u32 {sr(S_W)}, 2")
            e(f"s_cbranch_scc0 L_nok_{u}")
            e(f"s_add_u32 m0, {sr(S_M0P)}, {3 * 8192}"); e("s_nop 0")
            emit_ring_group(e)
            e.label(f"L_nok_{u}")
            groups += 1
        e("s_waitcnt lgkmcnt(0)")
        for ins in valu: e(ins)
        emit_tile_prologue(e, n, "q", o, t)
    assert groups == 4
    emit_qd_regs(e)
    e("s_waitcnt vmcnt(8)")
    e("s_barrier")
    stamp(e, o, sb + 1)
    e(f"s_mov_b32 m0, {sr(S_M0R)}")
    emit_kread(e, 8192)
    emit_ring_group(e)
    e(f"s_mov_b32 m0, {DUMMY}")
    for i in range(2): e(f"v_xor_b32 {vr(V_AK + i)}, 0x4000, {vr(V_AK + i)}")
    e(f"buffer_load_dwordx4 {vr(V_LANE16)}, {sr(S_QSRD, 4)}, {sr(S_OOB)} offen lds")
    e("s_waitcnt lgkmcnt(0)")

def emit_trans(e, n1, n2, o):
    sb1 = 1 if n1 == 5 else 7
    sb2 = 1 if n2 == 5 else 7
    emit_bpart(e, n1, o, True)
    e(f"v_add_u32 {vr(V_T1)}, {sr(S_STG)}, {vr(V_AK)}")
    e(f"v_add_u32 {vr(V_T2)}, {sr(S_STG)}, {vr(V_AK + 1)}")
    mf, last = bpart_mfmas(n1)
    R0 = V_S
    reads0, valu0 = qscale_tile(0, o, False, V_T1, V_T2, R0)
    reads1, valu1 = qscale_tile(1, o, True, V_T1, V_T2, R0 + 16)
    for r in reads0: e(r)
    for r in reads1: e(r)
    e("s_waitcnt lgkmcnt(0)")
    merge(e, mf, [(x, None) for x in valu0], 2)
    for ins in valu1: e(ins)
    for t in range(2, n2):
        reads, valu = qscale_tile(t, o, True, V_T1, V_T2, R0 + (t & 1) * 16)
        for r in reads: e(r)
        e("s_waitcnt lgkmcnt(0)")
        for ins in valu: e(ins)
    stamp(e, o, 6)
    for t in range(n1):
        for ins in epi_tile(t, o, True, pk=True): e(ins)
    stamp(e, o, sb1 + 4)
    emit_lzero(e, n2)
    e(f"s_mov_b32 {sr(S_SSRC)}, {sr(S_QO)}")
    e(f"s_mov_b32 {sr(S_DS)}, 2048"); e(f"s_mov_b32 {sr(S_DD)}, 2176")
    e(f"v_lshrrev_b32 {vr(V_X)}, 4, v0")
    e(f"v_mul_u32_u24 {vr(V_X)}, 272, {vr(V_X)}")
    e(f"v_and_b32 {vr(V_X + 1)}, 15, v0")
    e(f"v_lshl_add_u32 {vr(V_X)}, {vr(V_X + 1)}, 4, {vr(V_X)}")
    e(f"v_add_u32 {vr(V_SA)}, {sr(S_STG)}, {vr(V_X)}")
    e(f"s_mov_b32 m0, {sr(S_M0R)}")
    e(f"s_mov_b32 {sr(S_BLK)}, 1")
    e(f"s_mov_b32 {sr(S_HEAD)}, {sr(S_HEADN)}")
    e(f"s_mov_b32 {sr(S_QO)}, {sr(S_QON)}")
    stamp(e, o, sb2 + 1)
    tiles = list(range(n2))
    for m in mpass_mfmas(tiles): e(m)
    e("s_nop 7"); e("s_nop 1")
    for ins in mpass_valu(tiles): e(ins)
    emit_range(e, n2, "o", o, "A")

def emit_final(e, n, o):
    emit_bpart(e, n, o, False)
    e(f"v_and_b32 {vr(V_X)}, 15, v0")
    e(f"v_lshlrev_b32 {vr(V_T2)}, 8, {vr(V_X)}")
    e(f"v_bfe_u32 {vr(V_X)}, v0, 4, 1")
    e(f"v_lshl_add_u32 {vr(V_T2)}, {vr(V_X)}, 5, {vr(V_T2)}")
    e(f"v_lshrrev_b32 {vr(V_X)}, 5, v0")
    e(f"v_lshl_add_u32 {vr(V_T2)}, {vr(V_X)}, 4, {vr(V_T2)}")
    mf, last = bpart_mfmas(n)
    fill = []
    for t in range(n): fill += [(x, last[t]) for x in epi_tile(t, o, False)]
    merge(e, mf, fill, o.epi_per_gap)
    stamp(e, o, (1 if n == 5 else 7) + 4)

def gen(o):
    global OPT
    OPT = o
    _sched_cache.clear()
    e = Em()
    e.raw(f"; @launch grid=(256,1,1) block=(256,1,1) lds={LDS_BYTES}")
    e.raw('.amdgcn_target "amdgcn-amd-amdhsa--gfx950"')
    e.raw(".text")
    e.raw(f".globl {KNAME}")
    e.raw(".p2align 8")
    e.raw(f".type {KNAME},@function")
    e.label(KNAME)
    e("s_cmp_ge_u32 s2, 256")
    e("s_cbranch_scc1 L_exit")
    e("s_load_dwordx4 s[4:7], s[0:1], 0")
    e("s_load_dwordx4 s[8:11], s[0:1], 16")
    if o.diag: e(f"s_load_dwordx2 {sr(S_WS, 2)}, s[0:1], 40")
    stamp(e, o, 0)
    if o.spin_to:
        e("s_memrealtime s[88:89]"); e("s_memtime s[92:93]")
    if o.diag: e(f"s_memtime {sr(S_STAMP + 28, 2)}")
    e(f"v_lshrrev_b32 {vr(V_T0)}, 6, v0")
    e(f"v_and_b32 v0, 63, v0")
    e("s_nop 0")
    e(f"v_readfirstlane_b32 {sr(S_W)}, {vr(V_T0)}")
    e(f"s_and_b32 {sr(S_T0)}, s2, 7")
    e(f"s_lshr_b32 {sr(S_T1)}, s2, 3")
    e(f"s_and_b32 {sr(S_ROLE)}, {sr(S_T1)}, 1")
    e(f"s_andn2_b32 {sr(S_T1)}, {sr(S_T1)}, 1")
    e(f"s_lshl_b32 {sr(S_T0)}, {sr(S_T0)}, 5")
    e(f"s_add_u32 {sr(S_HEAD)}, {sr(S_T0)}, {sr(S_T1)}")
    e(f"s_mov_b32 {sr(S_BLK)}, 0")
    if o.prof: e("s_mov_b32 s92, 0")
    k = V_T0; g = V_T1; T = V_TMP
    e(f"v_lshrrev_b32 {vr(T)}, 3, v0")
    e(f"v_and_b32 {vr(T + 1)}, 7, v0")
    e(f"v_lshrrev_b32 {vr(T + 2)}, 1, {vr(T)}")
    e(f"v_lshlrev_b32 {vr(T + 3)}, 1, {vr(T + 2)}")
    e(f"s_cmp_lt_u32 {sr(S_W)}, 2")
    e(f"s_cselect_b64 vcc, -1, 0")
    for a1 in range(2):
        e(f"v_add_u32 {vr(T + 4)}, {4 * a1}, {vr(T + 2)}")
        e(f"v_cndmask_b32 {vr(T + 4)}, {vr(T + 3)}, {vr(T + 4)}, vcc")
        e(f"v_xor_b32 {vr(T + 4)}, {vr(T + 4)}, {vr(T + 1)}")
        e(f"v_lshlrev_b32 {vr(T + 4)}, 4, {vr(T + 4)}")
        e(f"v_lshl_add_u32 {vr(T + 4)}, {vr(T)}, 8, {vr(T + 4)}")
        e(f"v_add_u32 {vr(V_DMA + 2 * a1)}, {BIAS}, {vr(T + 4)}")
        e(f"v_mov_b32 {vr(V_DMA + 2 * a1 + 1)}, {vr(T + 4)}")
    e(f"v_and_b32 {vr(k)}, 15, v0")
    e(f"v_lshrrev_b32 {vr(g)}, 4, v0")
    e(f"v_lshlrev_b32 {vr(V_LANE16)}, 4, v0")
    e(f"v_lshrrev_b32 {vr(T)}, 3, {vr(k)}")
    e(f"v_lshlrev_b32 {vr(T)}, 11, {vr(T)}")
    e(f"v_and_b32 {vr(T + 1)}, 7, {vr(k)}")
    e(f"v_lshl_add_u32 {vr(T)}, {vr(T + 1)}, 7, {vr(T)}")
    e(f"v_bfe_u32 {vr(T + 1)}, {vr(k)}, 1, 3")
    for b in range(2):
        e(f"v_add_u32 {vr(T + 2)}, {4 * b}, {vr(g)}")
        e(f"v_xor_b32 {vr(T + 2)}, {vr(T + 2)}, {vr(T + 1)}")
        e(f"v_lshl_add_u32 {vr(V_AK + b)}, {vr(T + 2)}, 4, {vr(T)}")
    e(f"v_mul_u32_u24 {vr(V_OW)}, 272, {vr(k)}")
    e(f"v_lshl_add_u32 {vr(V_OW)}, {vr(g)}, 3, {vr(V_OW)}")
    e(f"v_bfe_u32 {vr(T)}, v0, 2, 2")
    e(f"v_and_b32 {vr(T + 1)}, 1, {vr(g)}")
    e(f"v_lshl_add_u32 {vr(T)}, {vr(T + 1)}, 2, {vr(T)}")
    e(f"v_lshrrev_b32 {vr(T + 1)}, 1, {vr(g)}")
    e(f"v_lshlrev_b32 {vr(T + 1)}, 11, {vr(T + 1)}")
    e(f"v_lshl_add_u32 {vr(T + 1)}, {vr(T)}, 7, {vr(T + 1)}")
    e(f"v_and_b32 {vr(T + 2)}, 1, v0")
    e(f"v_lshl_add_u32 {vr(T + 1)}, {vr(T + 2)}, 3, {vr(T + 1)}")
    e(f"v_add_u32 {vr(T + 1)}, {VREG}, {vr(T + 1)}")
    e(f"v_bfe_u32 {vr(T + 2)}, {vr(T)}, 1, 2")
    e(f"v_lshlrev_b32 {vr(T + 2)}, 1, {vr(T + 2)}")
    e(f"v_bfe_u32 {vr(T + 3)}, v0, 1, 1")
    for b in range(4):
        e(f"v_add_u32 {vr(T + 4)}, {2 * b}, {vr(T + 3)}")
        e(f"v_xor_b32 {vr(T + 4)}, {vr(T + 4)}, {vr(T + 2)}")
        e(f"v_lshl_add_u32 {vr(V_AV + b)}, {vr(T + 4)}, 4, {vr(T + 1)}")
    e(f"s_mov_b32 {sr(S_SCALE2)}, 0x{o.scale_bits:08x}")
    e(f"s_mov_b32 {sr(S_SCALE2 + 1)}, 0x{o.scale_bits:08x}")
    e(f"s_mov_b32 {sr(S_OOB)}, 0x{OOB:x}")
    e(f"v_mov_b32 {vr(T)}, 0x3f803f80")
    for i in range(4): e(f"v_accvgpr_write_b32 {ar(A_ONES + i)}, {vr(T)}")
    e(f"s_mul_i32 {sr(S_STG)}, {sr(S_W)}, {STGW}")
    e(f"s_add_u32 {sr(S_STG)}, {sr(S_STG)}, {STG0}")
    e(f"v_add_u32 {vr(V_OW)}, {sr(S_STG)}, {vr(V_OW)}")
    e("s_waitcnt lgkmcnt(0)")
    e(f"s_mov_b32 s12, s4"); e(f"s_mov_b32 s13, s5"); e(f"s_mov_b32 s14, {Q_BYTES}"); e(f"s_mov_b32 s15, 0x00020000")
    e(f"s_mov_b32 s20, s10"); e(f"s_mov_b32 s21, s11"); e(f"s_mov_b32 s22, {Q_BYTES}"); e(f"s_mov_b32 s23, 0x00020000")
    e(f"s_cmp_lt_u32 {sr(S_W)}, 2")
    e(f"s_cselect_b32 s16, s6, s8")
    e(f"s_cselect_b32 s17, s7, s9")
    e(f"s_sub_u32 s16, s16, {BIAS}")
    e(f"s_subb_u32 s17, s17, 0")
    e(f"s_add_u32 {sr(S_T0)}, {sr(S_HEAD)}, 2")
    e(f"s_mul_i32 s18, {sr(S_T0)}, {HEAD_KV}")
    e(f"s_add_u32 s18, s18, {BIAS}")
    e(f"s_mov_b32 s19, 0x00020000")
    e(f"s_and_b32 {sr(S_T0)}, {sr(S_W)}, 1")
    e(f"s_lshl_b32 {sr(S_T0)}, {sr(S_T0)}, 12")
    e(f"s_mul_i32 {sr(S_OFF0)}, {sr(S_HEAD)}, {HEAD_KV}")
    e(f"s_add_u32 {sr(S_OFF0)}, {sr(S_OFF0)}, {sr(S_T0)}")
    e(f"s_lshr_b32 {sr(S_T1)}, {sr(S_W)}, 1")
    e(f"s_mul_i32 {sr(S_T2)}, {sr(S_T1)}, {VREG}")
    e(f"s_add_u32 {sr(S_M0R)}, {sr(S_T0)}, {sr(S_T2)}")
    e(f"s_mul_i32 {sr(S_T1)}, {sr(S_T1)}, 8192")
    e(f"s_add_u32 {sr(S_M0P)}, {sr(S_M0R)}, {sr(S_T1)}")
    e(f"v_and_b32 {vr(V_X)}, 1, v0")
    e(f"v_cmp_eq_u32 vcc, 0, {vr(V_X)}")
    e(f"v_mov_b32 {vr(V_X)}, 0xeeeeeeee")
    e(f"v_mov_b32 {vr(V_X + 1)}, 0x44444444")
    e(f"v_cndmask_b32 {vr(V_IDX)}, {vr(V_X)}, {vr(V_X + 1)}, vcc")
    e(f"s_cmp_eq_u32 {sr(S_ROLE)}, 0")
    e("s_cbranch_scc0 L_role1")
    for (n1, n2, r) in ((5, 4, "r0"), (4, 5, "r1")):
        if r == "r1": e.label("L_role1")
        emit_cold(e, n1, o, r)
        emit_loop(e, n1, "q", o, f"{r}a")
        emit_trans(e, n1, n2, o)
        emit_loop(e, n2, "o", o, f"{r}b")
        emit_final(e, n2, o)
        e("s_branch L_done")
    e.label("L_done")
    if o.spin_to:
        e("s_waitcnt vmcnt(0) lgkmcnt(0)")
        if o.spin_mode == "abs":
            e(f"s_add_u32 s88, s88, {o.spin_to}")
        else:
            e("s_memtime s[94:95]"); e("s_memrealtime s[90:91]"); e("s_waitcnt lgkmcnt(0)")
            e("s_sub_u32 s94, s94, s92")
            e(f"s_lshr_b32 s94, s94, {o.spin_to}")
            e("s_add_u32 s88, s90, s94")
        e.label("L_spin")
        e("s_memrealtime s[90:91]"); e("s_waitcnt lgkmcnt(0)")
        e("s_sub_u32 s91, s90, s88")
        e("s_cmp_lt_i32 s91, 0")
        e("s_cbranch_scc1 L_spin")
    if o.diag:
        e("s_waitcnt vmcnt(0) lgkmcnt(0)")
        stamp(e, o, 13)
        e(f"s_memtime {sr(S_STAMP + 30, 2)}")
        e("s_waitcnt lgkmcnt(0)")
        e(f"s_lshl_b32 {sr(S_T0)}, s2, 2")
        e(f"s_add_u32 {sr(S_T0)}, {sr(S_T0)}, {sr(S_W)}")
        e(f"s_lshl_b32 {sr(S_T0)}, {sr(S_T0)}, 7")
        e(f"s_mov_b32 s4, {sr(S_WS)}"); e(f"s_mov_b32 s5, {sr(S_WS + 1)}"); e("s_mov_b32 s6, 0x200000"); e("s_mov_b32 s7, 0x00020000")
        if o.prof:
            e(f"v_lshlrev_b32 v2, 2, v0")
            e(f"s_lshl_b32 s93, {sr(S_T0)}, 1")
            e(f"s_add_u32 s93, s93, 0x20000")
            e(f"v_add_u32 v2, s93, v2")
            e(f"buffer_store_dword {vr(V_PROF)}, v2, s[4:7], 0 offen")
            e("s_waitcnt vmcnt(0)")
        for i in range(32): e(f"v_writelane_b32 v1, {sr(S_STAMP + i)}, {i}") if i else e(f"v_mov_b32 v1, {sr(S_STAMP)}")
        e(f"v_lshlrev_b32 v2, 2, v0")
        e(f"v_add_u32 v2, {sr(S_T0)}, v2")
        e("v_cmp_gt_u32 vcc, 32, v0")
        e("s_and_saveexec_b64 s[86:87], vcc")
        e("buffer_store_dword v1, v2, s[4:7], 0 offen")
        e("s_waitcnt vmcnt(0)")
    e.label("L_exit")
    e("s_endpgm")
    e.raw('.section .rodata,"a"')
    e.raw(".p2align 6")
    e.raw(f".amdhsa_kernel {KNAME}")
    e.raw("  .amdhsa_next_free_vgpr 512")
    e.raw("  .amdhsa_next_free_sgpr 96")
    e.raw("  .amdhsa_accum_offset 256")
    e.raw("  .amdhsa_group_segment_fixed_size 0")
    e.raw("  .amdhsa_kernarg_size 48")
    e.raw("  .amdhsa_user_sgpr_count 2")
    e.raw("  .amdhsa_user_sgpr_kernarg_segment_ptr 1")
    e.raw("  .amdhsa_system_sgpr_workgroup_id_x 1")
    e.raw(".end_amdhsa_kernel")
    return e.text()

def default_opt():
    import struct, math
    o = Opt()
    o.pv_order = 'dt'; o.lat_exp = 3; o.ephase = 0; o.m_back = 0; o.v_start = 0; o.lat_ds = 6; o.dma_step = 3
    o.diag = False; o.diag_cyc = False
    o.epi_per_gap = 2; o.q_first = 5; o.exp_k0 = 0; o.prof = False; o.spin_to = 0; o.spin_mode = "abs"; o.x_nobar = False; o.x_nodma = False; o.x_novm = False
    o.kv_pol = "nt"; o.q_pol = "nt"; o.o_pol = ""
    o.scale_bits = struct.unpack("<I", struct.pack("<f", (128 ** -0.5) * math.log2(math.e)))[0]
    return o

if __name__ == "__main__":
    ap = argparse.ArgumentParser()
    ap.add_argument("out")
    ap.add_argument("--diag", action="store_true")
    ap.add_argument("--cyc", action="store_true")
    ap.add_argument("--set", action="append", default=[])
    a = ap.parse_args()
    o = default_opt()
    o.diag = a.diag; o.diag_cyc = a.cyc
    for kv in a.set:
        k, v = kv.split("=")
        setattr(o, k, eval(v))
    open(a.out, "w").write(gen(o))
```

```python
import sys, argparse

KNAME = "standalone__mha_softmax__near_ridge_kernel"
NHEAD = 256; SQ = 576; SK = 1024; D = 128
Q_BYTES = NHEAD * SQ * D * 2
HEAD_KV = SK * D * 2
HEAD_Q = SQ * D * 2
BIAS = 896
VREG = 32768
STG0 = 65536
STGW = 21760
DUMMY = STG0 + 4 * STGW
LDS_BYTES = DUMMY + 3072
OPITCH = 4352

S_QSRD = 12; S_KVSRD = 16; S_OSRD = 20
S_W = 24; S_OFF = 25; S_CNT = 26; S_END = 27; S_BLK = 28; S_HEAD = 29; S_QO = 30; S_QON = 31
S_M0R = 32; S_STG = 33; S_SSRC = 34; S_SDST = 35; S_DS = 36; S_DD = 37; S_XS = 38; S_XD = 39
S_T0 = 40; S_T1 = 41; S_T2 = 42; S_T3 = 43; S_SCALE2 = 44; S_OFF0 = 46; S_M0P = 47
S_STAMP = 48
S_WS = 80
S_ROLE = 82; S_OOB = 83; S_THR = 84; S_HEADN = 85; S_SAVE = 86
OOB = 0x7ff00000
V_T0 = 1; V_T1 = 2; V_T2 = 3; V_IDX = 1; V_PROF = 121
V_AK = 4
V_AV = 6
V_DMA = 10
V_LANE16 = 14
V_OW = 15
V_NEGM = 16
V_S = 36
V_P = 76
V_TMP = 116
V_SD = 116
V_SA = 120
V_QD = 122
V_X = 124
V_O = 128
A_Q = 0; A_K = 80; A_V = 112; A_L = 144; A_ONES = 164; A_O4 = 168

def vr(b, n=1): return f"v{b}" if n == 1 else f"v[{b}:{b+n-1}]"
def ar(b, n=1): return f"a{b}" if n == 1 else f"a[{b}:{b+n-1}]"
def sr(b, n=1): return f"s{b}" if n == 1 else f"s[{b}:{b+n-1}]"
def rS(t, kt, r=None):
    b = V_S + t * 8 + kt * 4
    return vr(b, 4) if r is None else vr(b + r)
def rP(par, t, j=None):
    b = V_P + t * 8 + par * 4
    return vr(b, 4) if j is None else vr(b + j)
def rNEGM(t): return vr(V_NEGM + 4 * t, 4)
def rO(t, dt, r=None):
    if t < 4:
        b = V_O + t * 32 + dt * 4
        return vr(b, 4) if r is None else vr(b + r)
    b = A_O4 + dt * 4
    return ar(b, 4) if r is None else ar(b + r)
def rQ(t, c): return ar(A_Q + t * 16 + c * 4, 4)
def rK(kt, c): return ar(A_K + (kt * 4 + c) * 4, 4)
def rV(dt, h=None):
    b = A_V + dt * 4
    return ar(b, 4) if h is None else ar(b + 2 * h, 2)
def rL(t): return ar(A_L + 4 * t, 4)

class Opt: pass
OPT = None

class Em:
    def __init__(self): self.l = []
    def __call__(self, s): self.l.append("  " + s)
    def label(self, s): self.l.append(s + ":")
    def raw(self, s): self.l.append(s)
    def text(self): return "\n".join(self.l) + "\n"

def half_list(n, par, o):
    L = []
    for t in range(n):
        if par == 1: L.append(("SM", t, par))
        for kt in range(2):
            for c in range(4): L.append(("QK", t, kt, c, par))
    if o.pv_order == "dt":
        for dt in range(8):
            for t in range(n): L.append(("PV", t, dt, par))
    else:
        for t in range(n):
            for dt in range(8): L.append(("PV", t, dt, par))
    return L

_sched_cache = {}
def build_schedule(n, side, o):
    key = (n, side)
    if key in _sched_cache: return _sched_cache[key]
    h1 = half_list(n, 1, o); h0 = half_list(n, 0, o)
    mf = h1 + h0
    G1 = len(h1); G = len(mf)
    base = {1: 0, 0: G1}
    end = {1: G1, 0: G}
    idx = {m: i for i, m in enumerate(mf)}
    nE = 16 * n
    isE = [False] * G
    for k in range(nE): isE[(int(k * G / nE) + o.ephase) % G] = True
    assert sum(isE) == nE and not isE[G - 1], "ephase"
    gaps = [[] for _ in range(G)]
    cap = [0 if isE[g] else 2 for g in range(G)]
    order = [(idx[("QK", t, kt, 3, par)] + o.lat_exp, t, kt, par) for par in (1, 0) for t in range(n) for kt in range(2)]
    Elist = [g for g in range(G) if isE[g]]
    seq = [(rdy, t, kt, r, par) for (rdy, t, kt, par) in order for r in range(4)]
    exp_pos = None
    for k0 in range(nE):
        cand = {}
        ok = True
        for i, (rdy, t, kt, r, par) in enumerate(seq):
            kk = k0 + i
            pos = Elist[kk % nE] + G * (kk // nE)
            nxt = idx[("QK", t, kt, 0, 0)] if par == 1 else G + idx[("QK", t, kt, 0, 1)]
            if pos < rdy or pos >= nxt - 2: ok = False; break
            cand[(t, kt, r, par)] = pos
        if ok and k0 >= o.exp_k0:
            exp_pos = cand; break
    assert exp_pos is not None, "no feasible exp placement"
    for (t, kt, r, par), pos in exp_pos.items():
        gaps[pos % G].append(dict(k="exp", t=t, kt=kt, r=r, src=par, pos=pos, old=(pos >= G)))
    assert all(len(gaps[g]) == 1 for g in range(G) if isE[g])
    VALU = ("cvt", "vxor", "vadd")
    DS = ("dsK", "dsV", "dsS")
    def place(item, lo, hi, alone=False, rev=False):
        rng = range(lo, hi + 1) if not rev else range(hi, lo - 1, -1)
        for p in rng:
            g = p % G
            if isE[g]: continue
            if alone:
                if cap[g] == 2:
                    cap[g] = 0; gaps[g].append(item); item["pos"] = p; return p
                continue
            if cap[g] == 0: continue
            cap[g] -= 1
            if item["k"] not in VALU and item["k"] != "kwait" and any(x["k"] in VALU for x in gaps[g]): gaps[g].insert(0, item)
            else: gaps[g].append(item)
            item["pos"] = p
            return p
        raise RuntimeError(f"n={n} side={side}: cannot place {item} in [{lo},{hi}]")
    cap[G - 1] = 0; gaps[G - 1].append(dict(k="ctl", par=0))
    for (rdy, t, kt, par) in order:
        for jj in range(2):
            p = exp_pos[(t, kt, 2 * jj + 1, par)]
            it = dict(k="cvt", t=t, j=kt * 2 + jj, src=par)
            pp = place(it, p + 1, p + 10)
            it["old"] = pp >= G
            nxt = idx[("QK", t, kt, 0, 0)] if par == 1 else G + idx[("QK", t, kt, 0, 1)]
            assert pp < nxt
            if par == 1: fu = min(i for i, m in enumerate(mf) if m[0] == "PV" and m[1] == t and m[3] == 0)
            else: fu = G + idx[("SM", t, 1)]
            assert pp + 1 < fu, ("cvt deadline", t, kt, par, pp, fu)
            lo_ok = idx[("SM", t, 1)] if par == 1 else 0
            assert pp > lo_ok
    info = {}
    for par in (1, 0):
        B, E = base[par], end[par]
        last = E - 2 if par == 0 else E - 1
        firstPV = min(i for i, m in enumerate(mf) if m[0] == "PV" and m[3] == par)
        lastQK = max(i for i, m in enumerate(mf) if m[0] == "QK" and m[4] == par)
        mpos = None
        for p in range(firstPV - 1 - o.m_back, firstPV - 12, -1):
            if not isE[p] and cap[p] == 2:
                cap[p] = 0; gaps[p] += [dict(k="mwait", par=par), dict(k="bar", par=par)]; mpos = p; break
        assert mpos is not None
        p = B + o.v_start
        if side == "o": psS = place(dict(k="dsS", par=par), p, mpos - o.lat_ds)
        for dt in range(8):
            for h in range(2):
                p = max(p, place(dict(k="dsV", dt=dt, h=h, par=par), p, mpos - o.lat_ds))
        lastdsV = p
        lastK = {(kt, c): max(i for i, m in enumerate(mf) if m[0] == "QK" and m[2] == kt and m[3] == c and m[4] == par) for kt in range(2) for c in range(4)}
        pm0 = place(dict(k="m0", par=par), mpos + 1, last)
        p = pm0 + 1
        kp = mpos + 1
        kl = [(kt, c) for kt in range(2) for c in range(4)]
        for b in range(4):
            lastdma = place(dict(k="dma", b=b, par=par), p, last, alone=True)
            p = lastdma + o.dma_step
            for _ in range(2):
                kt, c = kl.pop(0)
                kp = place(dict(k="dsK", kt=kt, c=c, par=par), max(kp, lastK[(kt, c)]), last - o.lat_ds)
        place(dict(k="kwait", par=par), kp + o.lat_ds, last, rev=True)
        place(dict(k="soff", par=par), lastdma + 1, last)
        if side == "q":
            if par == 0: place(dict(k="m0tog", par=par), pm0 + 1, last)
            pm = place(dict(k="sm0", par=par), lastdma + 1, last - 1)
            place(dict(k="sdma", par=par), pm + 1, last, alone=True)
            if par == 1:
                q0 = place(dict(k="supd", i=0, par=par), B, pm - 1)
                q1 = place(dict(k="supd", i=1, par=par), B, pm - 1)
                place(dict(k="supd", i=2, par=par), q0 + 1, G - 2)
                place(dict(k="supd", i=3, par=par), q1 + 1, G - 2)
        elif side == "o":
            ps = place(dict(k="sst", par=par), mpos + 1, last, alone=True)
            if par == 0:
                place(dict(k="supd", i=0, par=par), ps + 1, last)
                place(dict(k="vadd", par=par), psS + 1, last)
        if par == 0:
            for i in range(4): place(dict(k="vxor", reg=V_AV + i, par=par), lastdsV + 1, last)
        else:
            for i in range(2): place(dict(k="vxor", reg=V_AK + i, par=par), kp + 1, last)
        info[par] = dict(mpos=mpos)
    _sched_cache[key] = (mf, gaps, cap, G1)
    return mf, gaps, cap, G1

def describe(n, side, o):
    mf, gaps, cap, G1 = build_schedule(n, side, o)
    for g, m in enumerate(mf):
        print(g, m, [(x["k"], x.get("t", ""), x.get("dt", x.get("kt", x.get("j", x.get("b", x.get("i", "")))))) for x in gaps[g]], "free", cap[g])
    print("free slots:", sum(cap))

def mfma_str(m, zeroC=False):
    if m[0] == "QK":
        _, t, kt, c, par = m
        C = rNEGM(t) if c == 0 else rS(t, kt)
        return f"v_mfma_f32_16x16x32_bf16 {rS(t, kt)}, {rK(kt, c)}, {rQ(t, c)}, {C}"
    if m[0] == "SM":
        t = m[1]
        return f"v_smfmac_f32_16x16x64_bf16 {rL(t)}, {ar(A_ONES, 4)}, {vr(V_P + 8 * t, 8)}, {vr(V_IDX)}"
    _, t, dt, par = m
    return f"v_mfma_f32_16x16x32_bf16 {rO(t, dt)}, {rV(dt)}, {rP(par, t)}, {'0' if zeroC else rO(t, dt)}"

def dma_str(b):
    return f"buffer_load_dwordx4 {vr(V_DMA + b)}, {sr(S_KVSRD, 4)}, {sr(S_OFF)} offen offset:{b * 1024} {OPT.kv_pol} lds"

def exp_str(x):
    rr = rS(x["t"], x["kt"], x["r"]); return f"v_exp_f32 {rr}, {rr}"
def cvt_str(x):
    t, j = x["t"], x["j"]; kt, jj = j >> 1, j & 1
    pb = x["src"] ^ 1
    return f"v_cvt_pk_bf16_f32 {rP(pb, t, j)}, {rS(t, kt, 2*jj)}, {rS(t, kt, 2*jj+1)}"

def emit_range(e, n, side, o, mode, vmn=None):
    mf, gaps, cap, G1 = build_schedule(n, side, o)
    G = len(mf)
    rng = {"pass": range(0, G), "it0": range(G1, G), "A": range(0, G1)}[mode]
    first = mode == "it0"; A = mode == "A"
    nside = 1 if side else 0
    if vmn is None: vmn = 2 * (4 + nside)
    for g in rng:
        m = mf[g]
        if not (A and m[0] != "QK"): e(mfma_str(m, zeroC=first))
        for x in gaps[g]:
            k = x["k"]
            par = x.get("par")
            if k == "exp":
                if A and x["src"] == 0: continue
                e(exp_str(x))
            elif k == "cvt":
                if A and x["src"] == 0: continue
                if A and m[0] != "QK": e("s_nop 0")
                e(cvt_str(x))
            elif k == "dsV":
                if A: continue
                dt, h = x["dt"], x["h"]
                e(f"ds_read_b64_tr_b16 {rV(dt, h)}, {vr(V_AV + (dt & 3))} offset:{((par + 1) & 1) * 8192 + h * 4096 + (dt >> 2) * 1024}")
            elif k == "dsS":
                if A or first: continue
                e(f"ds_read_b128 {vr(V_SD, 4)}, {vr(V_SA)} offset:{0 if par == 1 else 1088}")
            elif k == "dsK":
                kt, c = x["kt"], x["c"]
                e(f"ds_read_b128 {rK(kt, c)}, {vr(V_AK + (c & 1))} offset:{par * 8192 + kt * 4096 + (c >> 1) * 1024}")
            elif k == "kwait":
                e("s_waitcnt lgkmcnt(0)")
            elif k == "mwait":
                if A: continue
                e(f"s_waitcnt vmcnt({vmn}) lgkmcnt(0)" if not OPT.x_novm else "s_waitcnt lgkmcnt(0)")
            elif k == "bar":
                if A: continue
                if not OPT.x_nobar: e("s_barrier")
            elif k == "m0":
                if A: continue
                if side == "q":
                    if par == 0: e(f"s_xor_b32 m0, {sr(S_M0R)}, 0x2000")
                    else: e(f"s_mov_b32 m0, {sr(S_M0R)}")
                else:
                    e(f"s_xor_b32 m0, m0, 0x{0x2000 if par == 0 else 0x6000:x}")
            elif k == "m0tog":
                e(f"s_xor_b32 {sr(S_M0R)}, {sr(S_M0R)}, 0x4000")
            elif k == "dma":
                if A: continue
                if not OPT.x_nodma: e(dma_str(x["b"]))
            elif k == "soff":
                if A: continue
                e(f"s_add_u32 {sr(S_OFF)}, {sr(S_OFF)}, 8192")
            elif k == "sm0":
                if A: continue
                e(f"s_mov_b32 m0, {DUMMY if first else sr(S_SDST)}")
            elif k == "sdma":
                if A: continue
                a1 = 0 if par == 1 else 1
                e(f"buffer_load_dwordx4 {vr(V_QD + a1)}, {sr(S_QSRD, 4)}, {sr(S_OOB if first else S_SSRC)} offen offset:{a1 * 2048} {OPT.q_pol} lds")
            elif k == "sst":
                if A: continue
                e(f"buffer_store_dwordx4 {vr(V_SD, 4)}, {vr(V_LANE16)}, {sr(S_OSRD, 4)}, {sr(S_OOB if first else S_SSRC)} offen offset:{0 if par == 1 else 1024} {OPT.o1_pol}")
            elif k == "supd":
                if A or first: continue
                i = x["i"]
                if side == "q":
                    e([f"s_add_u32 {sr(S_SSRC)}, {sr(S_SSRC)}, {sr(S_DS)}", f"s_add_u32 {sr(S_SDST)}, {sr(S_SDST)}, {sr(S_DD)}",
                       f"s_xor_b32 {sr(S_DS)}, {sr(S_DS)}, {sr(S_XS)}", f"s_xor_b32 {sr(S_DD)}, {sr(S_DD)}, {sr(S_XD)}"][i])
                else:
                    e(f"s_add_u32 {sr(S_SSRC)}, {sr(S_SSRC)}, {sr(S_DS)}")
            elif k == "vadd":
                if A or first: continue
                e(f"v_add_u32 {vr(V_SA)}, {sr(S_DD)}, {vr(V_SA)}")
            elif k == "vxor":
                e(f"v_xor_b32 {vr(x['reg'])}, 0x4000, {vr(x['reg'])}")
            elif k == "ctl":
                pass
            else:
                raise ValueError(k)

def old_items(n, side, o):
    mf, gaps, cap, G1 = build_schedule(n, side, o)
    ex = [x for g in range(G1) for x in gaps[g] if x["k"] == "exp" and x["src"] == 0]
    cv = [x for g in range(G1) for x in gaps[g] if x["k"] == "cvt" and x["src"] == 0]
    return ex, cv

def stamp(e, o, i):
    if o.enc is not None:
        kind = {0: "start", 1: "qissue", 7: "qissue", 2: "bar", 8: "bar", 3: "loop0", 9: "loop0", 4: "loopend", 10: "loopend", 5: "epiend", 11: "epiend", 6: "qscaled", 13: "end"}.get(i)
        for which, reg in ((o.enc[0], 88), (o.enc[1], 90)):
            if which == (o.ctx, kind) or (kind == "start" and which[1] == "start"): e(f"s_memrealtime s[{reg}:{reg+1}]")
    if not o.diag: return
    if o.diag_cyc: e(f"s_memtime {sr(S_STAMP + 2 * i, 2)}")
    else: e(f"s_memrealtime {sr(S_STAMP + 2 * i, 2)}")

_uid = [0]
def uid():
    _uid[0] += 1
    return _uid[0]

def emit_ring_group(e):
    for b in range(4): e(dma_str(b))
    e(f"s_add_u32 {sr(S_OFF)}, {sr(S_OFF)}, 8192")

def emit_qo(e, n, head_sreg, dst):
    rowbase = 0 if n == 5 else 320
    e(f"s_mul_i32 {sr(dst)}, {sr(head_sreg)}, {HEAD_Q}")
    e(f"s_mul_i32 {sr(S_T0)}, {sr(S_W)}, {16 * n * 256}")
    e(f"s_add_u32 {sr(dst)}, {sr(dst)}, {sr(S_T0)}")
    e(f"s_add_u32 {sr(dst)}, {sr(dst)}, {rowbase * 256}")

def emit_qd_regs(e):
    T = V_X
    e(f"v_lshrrev_b32 {vr(T)}, 3, v0")
    e(f"v_and_b32 {vr(T + 1)}, 7, v0")
    e(f"v_lshrrev_b32 {vr(T + 2)}, 1, {vr(T)}")
    for a1 in range(2):
        e(f"v_add_u32 {vr(T + 3)}, {4 * a1}, {vr(T + 2)}")
        e(f"v_xor_b32 {vr(T + 3)}, {vr(T + 3)}, {vr(T + 1)}")
        e(f"v_lshlrev_b32 {vr(T + 3)}, 4, {vr(T + 3)}")
        e(f"v_lshl_add_u32 {vr(V_QD + a1)}, {vr(T)}, 8, {vr(T + 3)}")

def emit_q_dma_tile(e, t):
    for hh in range(2):
        e(f"s_add_u32 m0, {sr(S_STG)}, {t * 4096 + hh * 1024}")
        e(f"s_add_u32 {sr(S_T2)}, {sr(S_QO)}, {t * 4096 + hh * 128}")
        for a1 in range(2):
            e(f"buffer_load_dwordx4 {vr(V_QD + a1)}, {sr(S_QSRD, 4)}, {sr(S_T2)} offen offset:{a1 * 2048} {OPT.q_pol} lds")

def qscale_tile(t, o, pk, AQ0, AQ1, R):
    reads = [f"ds_read_b128 {vr(R + 4 * c, 4)}, {vr(AQ0 if (c & 1) == 0 else AQ1)} offset:{t * 4096 + (c >> 1) * 1024}" for c in range(4)]
    chains = []
    for i in range(16):
        src = R + i
        t0 = V_TMP + (i % 4) * 2
        ch = [f"v_lshlrev_b32 {vr(t0)}, 16, {vr(src)}", f"v_and_b32 {vr(t0 + 1)}, 0xffff0000, {vr(src)}"]
        if pk: ch.append(f"v_pk_mul_f32 {vr(t0, 2)}, {vr(t0, 2)}, {sr(S_SCALE2, 2)}")
        else: ch += [f"v_mul_f32 {vr(t0)}, {sr(S_SCALE2)}, {vr(t0)}", f"v_mul_f32 {vr(t0 + 1)}, {sr(S_SCALE2)}, {vr(t0 + 1)}"]
        ch += [f"v_cvt_pk_bf16_f32 {vr(t0)}, {vr(t0)}, {vr(t0 + 1)}", f"v_accvgpr_write_b32 {ar(A_Q + t * 16 + i)}, {vr(t0)}"]
        chains.append(ch)
    out = []
    for g in range(4):
        ch = chains[4 * g:4 * g + 4]
        for s in range(len(ch[0])):
            for j in range(4): out.append(ch[j][s])
    return reads, out

def mpass_mfmas(tiles):
    L = []
    for t in tiles:
        for c in range(4):
            C = "0" if c == 0 else rS(t, 0)
            L.append(f"v_mfma_f32_16x16x32_bf16 {rS(t, 0)}, {rK(0, c)}, {rQ(t, c)}, {C}")
    return L

def mpass_valu(tiles):
    X = lambda t: V_X + 2 * (t & 1) if len(tiles) <= 2 else V_P + 8 * t + 4
    Y = lambda t: X(t) + 1
    L = []
    for t in tiles: L.append(f"v_max3_f32 {vr(X(t))}, {rS(t, 0, 0)}, {rS(t, 0, 1)}, {rS(t, 0, 2)}")
    for t in tiles: L.append(f"v_max_f32 {vr(X(t))}, {vr(X(t))}, {rS(t, 0, 3)}")
    for t in tiles: L.append(f"v_mov_b32 {vr(Y(t))}, {vr(X(t))}")
    L.append("s_nop 1")
    for t in tiles: L.append(f"v_permlane32_swap_b32 {vr(X(t))}, {vr(Y(t))}")
    L.append("s_nop 1")
    for t in tiles: L.append(f"v_max_f32 {vr(X(t))}, {vr(X(t))}, {vr(Y(t))}")
    for t in tiles: L.append(f"v_mov_b32 {vr(Y(t))}, {vr(X(t))}")
    L.append("s_nop 1")
    for t in tiles: L.append(f"v_permlane16_swap_b32 {vr(X(t))}, {vr(Y(t))}")
    L.append("s_nop 1")
    for t in tiles: L.append(f"v_max_f32 {vr(X(t))}, {vr(X(t))}, {vr(Y(t))}")
    for t in tiles:
        for i in range(4): L.append(f"v_sub_f32 {vr(V_NEGM + 4 * t + i)}, 0, {vr(X(t))}")
    L.append("s_nop 1")
    return L

def epi_tile(t, o, to_lds, pk=False):
    L = []
    R = V_X + 3
    L.append(f"v_accvgpr_read_b32 {vr(R)}, {ar(A_L + 4 * t)}")
    L.append(f"v_accvgpr_read_b32 {vr(R - 1)}, {ar(A_L + 4 * t + 1)}")
    if not to_lds: L.append(f"s_add_u32 {sr(S_T1)}, {sr(S_QO)}, {t * 4096}")
    L.append(f"v_add_f32 {vr(R)}, {vr(R)}, {vr(R - 1)}")
    L.append(f"v_rcp_f32 {vr(R)}, {vr(R)}")
    L.append("s_nop 0")
    if pk: L.append(f"v_mov_b32 {vr(R - 1)}, {vr(R)}")
    for dp in range(4):
        B = V_S + ((t * 4 + dp) % 4) * 4
        for half in range(2):
            dt = 2 * dp + half
            T = V_TMP + half * 4
            if t >= 4:
                for r in range(4): L.append(f"v_accvgpr_read_b32 {vr(T + r)}, {rO(t, dt, r)}")
                src = lambda r: vr(T + r); src2 = lambda r: vr(T + r, 2)
            else:
                b0 = V_O + t * 32 + dt * 4
                src = lambda r: vr(b0 + r); src2 = lambda r: vr(b0 + r, 2)
            if pk:
                for r in (0, 2): L.append(f"v_pk_mul_f32 {vr(T + r, 2)}, {src2(r)}, {vr(R - 1, 2)}")
            else:
                for r in range(4): L.append(f"v_mul_f32 {vr(T + r)}, {src(r)}, {vr(R)}")
            L.append(f"v_cvt_pk_bf16_f32 {vr(B + 2 * half)}, {vr(T)}, {vr(T + 1)}")
            L.append(f"v_cvt_pk_bf16_f32 {vr(B + 2 * half + 1)}, {vr(T + 2)}, {vr(T + 3)}")
            if to_lds:
                L.append(f"ds_write_b64 {vr(V_OW)}, {vr(B + 2 * half, 2)} offset:{t * OPITCH + dt * 32}")
        if not to_lds:
            L.append("s_nop 1")
            L.append(f"v_permlane16_swap_b32 {vr(B)}, {vr(B + 2)}")
            L.append(f"v_permlane16_swap_b32 {vr(B + 1)}, {vr(B + 3)}")
            L.append(f"buffer_store_dwordx4 {vr(B, 4)}, {vr(V_T2)}, {sr(S_OSRD, 4)}, {sr(S_T1)} offen offset:{dp * 64} {OPT.o_pol}")
    return L

def emit_bpart(e, n, o, with_stream):
    side = "q" if with_stream else "o"
    ex, cv = old_items(n, side, o)
    for x in ex: e(exp_str(x))
    for dt in range(8):
        for h in range(2):
            e(f"ds_read_b64_tr_b16 {rV(dt, h)}, {vr(V_AV + (dt & 3))} offset:{h * 4096 + (dt >> 2) * 1024}")
    for x in cv: e(cvt_str(x))
    if with_stream:
        e(f"s_waitcnt vmcnt(10) lgkmcnt(0)")
        e("s_barrier")
        e(f"s_mov_b32 m0, {sr(S_M0R)}")
        e("s_nop 0")
        emit_ring_group(e)
        e(f"s_mov_b32 m0, {DUMMY}")
        e("s_nop 0")
        e(f"buffer_load_dwordx4 {vr(V_LANE16)}, {sr(S_QSRD, 4)}, {sr(S_OOB)} offen lds")
    else:
        e("s_waitcnt lgkmcnt(0)")
    e("s_nop 0")

def bpart_mfmas(n):
    mf = []; last = []
    for t in range(n):
        mf.append(mfma_str(("SM", t, 1)))
        for dt in range(8): mf.append(mfma_str(("PV", t, dt, 1)))
        last.append(len(mf) - 1)
    return mf, last

def merge(e, mf, fill, per_gap, lag=3):
    i = 0
    for j, m in enumerate(mf):
        e(m)
        k = 0
        while i < len(fill) and k < per_gap:
            ins, dep = fill[i]
            if dep is not None and j < dep + lag - 1: break
            e(ins); i += 1; k += 1
    if i < len(fill) and any(d is not None for _, d in fill[i:]):
        e("s_nop 7"); e("s_nop 1")
    while i < len(fill):
        e(fill[i][0]); i += 1

def emit_lzero(e, n):
    for i in range(4 * n): e(f"v_accvgpr_write_b32 {ar(A_L + i)}, 0")

def x_items_tile(n, side, o, t):
    mf, gaps, cap, G1 = build_schedule(n, side, o)
    ex = sorted([x for g in range(G1) for x in gaps[g] if x["k"] == "exp" and x["src"] == 1 and x["t"] == t], key=lambda x: x["pos"])
    cv = sorted([x for g in range(G1) for x in gaps[g] if x["k"] == "cvt" and x["src"] == 1 and x["t"] == t], key=lambda x: x["pos"])
    return ex, cv

def emit_tile_prologue(e, n, side, o, t):
    e("s_nop 1")
    for m in mpass_mfmas([t]): e(m)
    e("s_nop 7"); e("s_nop 1")
    for ins in mpass_valu([t]): e(ins)
    for kt in range(2):
        for c in range(4): e(mfma_str(("QK", t, kt, c, 1)))
    ex, cv = x_items_tile(n, side, o, t)
    if ex and any(x["kt"] == 1 for x in ex[:4]): pass
    e("s_nop 3")
    n0 = sum(1 for x in ex if x["kt"] == 0)
    for i, x in enumerate(ex):
        if x["kt"] == 1 and i == n0 and n0 < 4: e("s_nop 7")
        e(exp_str(x))
    e("s_nop 0")
    for x in cv: e(cvt_str(x))

def emit_kread(e, imm):
    for kt in range(2):
        for c in range(4):
            e(f"ds_read_b128 {rK(kt, c)}, {vr(V_AK + (c & 1))} offset:{imm + kt * 4096 + (c >> 1) * 1024}")

def emit_loop(e, n, side, o, name):
    sb = 1 if n == 5 else 7
    stamp(e, o, sb + 2)
    n_other = 9 - n
    e(f"s_add_u32 {sr(S_CNT)}, {sr(S_OFF)}, {(4 * n_other + 1) * 8192}")
    e(f"s_add_u32 {sr(S_END)}, {sr(S_OFF)}, {31 * 8192}")
    emit_range(e, n, side, o, "it0", vmn=(9 if side == "q" else 10))
    e.label(f"L_odd_{name}")
    emit_range(e, n, side, o, "pass")
    if o.prof:
        e("s_memtime s[88:89]"); e("s_memrealtime s[90:91]"); e("s_waitcnt lgkmcnt(0)")
        e("s_lshl_b64 exec, 1, s92"); e("s_add_u32 s93, s92, 32"); e(f"v_mov_b32 {vr(V_PROF)}, s88"); e("s_lshl_b64 exec, 1, s93"); e("s_add_u32 s92, s92, 1"); e(f"v_mov_b32 {vr(V_PROF)}, s90"); e("s_mov_b64 exec, -1"); e("s_nop 4")
    e(f"s_cmp_eq_u32 {sr(S_OFF)}, {sr(S_CNT)}")
    e(f"s_cbranch_scc0 L_odd_{name}")
    e(f"s_cmp_eq_u32 {sr(S_CNT)}, {sr(S_END)}")
    e(f"s_cbranch_scc1 L_exit_{name}")
    e(f"s_mov_b32 {sr(S_CNT)}, {sr(S_END)}")
    e(f"s_mov_b32 {sr(S_SSRC)}, {sr(S_OOB)}")
    e(f"s_mov_b32 {sr(S_DS)}, 0")
    e(f"s_mov_b32 {sr(S_DD)}, 0")
    if side == "q":
        e(f"s_mov_b32 {sr(S_SDST)}, {DUMMY}")
        e(f"s_mov_b32 {sr(S_XS)}, 0")
        e(f"s_mov_b32 {sr(S_XD)}, 0")
    e(f"s_branch L_odd_{name}")
    e.label(f"L_exit_{name}")
    stamp(e, o, sb + 3)

def emit_cold(e, n, o, name):
    sb = 1 if n == 5 else 7
    n2 = 9 - n
    emit_qo(e, n, S_HEAD, S_QO)
    emit_qd_regs(e)
    e(f"s_mov_b32 {sr(S_OFF)}, {sr(S_OFF0)}")
    e(f"s_mov_b32 m0, {sr(S_M0P)}")
    e("s_nop 0")
    emit_ring_group(e)
    for t in range(n): emit_q_dma_tile(e, t)
    e(f"s_add_u32 m0, {sr(S_M0P)}, 8192"); e("s_nop 0")
    emit_ring_group(e)
    stamp(e, o, sb)
    e(f"v_add_u32 {vr(V_T1)}, {sr(S_STG)}, {vr(V_AK)}")
    e(f"v_add_u32 {vr(V_T2)}, {sr(S_STG)}, {vr(V_AK + 1)}")
    emit_lzero(e, n)
    e(f"s_add_u32 {sr(S_HEADN)}, {sr(S_HEAD)}, 1")
    emit_qo(e, n2, S_HEADN, S_QON)
    e(f"s_sub_u32 {sr(S_SSRC)}, {sr(S_QON)}, 3968")
    e(f"s_sub_u32 {sr(S_SDST)}, {sr(S_STG)}, 3072")
    e(f"s_mov_b32 {sr(S_DS)}, 3968"); e(f"s_mov_b32 {sr(S_XS)}, {128 ^ 3968}")
    e(f"s_mov_b32 {sr(S_DD)}, 3072"); e(f"s_mov_b32 {sr(S_XD)}, {1024 ^ 3072}")
    e(f"s_waitcnt vmcnt({4 * n + 4})")
    e("s_barrier")
    emit_kread(e, 0)
    issued_after = 4
    groups = 2
    for t in range(n):
        e(f"s_waitcnt vmcnt({4 * (n - 1 - t) + issued_after})")
        R = V_O + (t & 1) * 16
        reads, valu = qscale_tile(t, o, True, V_T1, V_T2, R)
        for r in reads: e(r)
        if groups < 3:
            e(f"s_add_u32 m0, {sr(S_M0P)}, {groups * 8192}"); e("s_nop 0")
            emit_ring_group(e); groups += 1; issued_after += 4
        elif groups == 3:
            u = uid()
            e(f"s_cmp_lt_u32 {sr(S_W)}, 2")
            e(f"s_cbranch_scc0 L_nok_{u}")
            e(f"s_add_u32 m0, {sr(S_M0P)}, {3 * 8192}"); e("s_nop 0")
            emit_ring_group(e)
            e.label(f"L_nok_{u}")
            groups += 1
        e("s_waitcnt lgkmcnt(0)")
        for ins in valu: e(ins)
        emit_tile_prologue(e, n, "q", o, t)
    assert groups == 4
    emit_qd_regs(e)
    e("s_waitcnt vmcnt(8)")
    e("s_barrier")
    stamp(e, o, sb + 1)
    e(f"s_mov_b32 m0, {sr(S_M0R)}")
    emit_kread(e, 8192)
    emit_ring_group(e)
    e(f"s_mov_b32 m0, {DUMMY}")
    for i in range(2): e(f"v_xor_b32 {vr(V_AK + i)}, 0x4000, {vr(V_AK + i)}")
    e(f"buffer_load_dwordx4 {vr(V_LANE16)}, {sr(S_QSRD, 4)}, {sr(S_OOB)} offen lds")
    e("s_waitcnt lgkmcnt(0)")

def emit_trans(e, n1, n2, o):
    sb1 = 1 if n1 == 5 else 7
    sb2 = 1 if n2 == 5 else 7
    emit_bpart(e, n1, o, True)
    e(f"v_add_u32 {vr(V_T1)}, {sr(S_STG)}, {vr(V_AK)}")
    e(f"v_add_u32 {vr(V_T2)}, {sr(S_STG)}, {vr(V_AK + 1)}")
    mf, last = bpart_mfmas(n1)
    R0 = V_S
    reads0, valu0 = qscale_tile(0, o, False, V_T1, V_T2, R0)
    reads1, valu1 = qscale_tile(1, o, True, V_T1, V_T2, R0 + 16)
    for r in reads0: e(r)
    for r in reads1: e(r)
    e("s_waitcnt lgkmcnt(0)")
    merge(e, mf, [(x, None) for x in valu0], 2)
    for ins in valu1: e(ins)
    for t in range(2, n2):
        reads, valu = qscale_tile(t, o, True, V_T1, V_T2, R0 + (t & 1) * 16)
        for r in reads: e(r)
        e("s_waitcnt lgkmcnt(0)")
        for ins in valu: e(ins)
    stamp(e, o, 6)
    for t in range(n1):
        for ins in epi_tile(t, o, True, pk=True): e(ins)
    stamp(e, o, sb1 + 4)
    emit_lzero(e, n2)
    e(f"s_mov_b32 {sr(S_SSRC)}, {sr(S_QO)}")
    e(f"s_mov_b32 {sr(S_DS)}, 2048"); e(f"s_mov_b32 {sr(S_DD)}, 2176")
    e(f"v_lshrrev_b32 {vr(V_X)}, 4, v0")
    e(f"v_mul_u32_u24 {vr(V_X)}, 272, {vr(V_X)}")
    e(f"v_and_b32 {vr(V_X + 1)}, 15, v0")
    e(f"v_lshl_add_u32 {vr(V_X)}, {vr(V_X + 1)}, 4, {vr(V_X)}")
    e(f"v_add_u32 {vr(V_SA)}, {sr(S_STG)}, {vr(V_X)}")
    e(f"s_mov_b32 m0, {sr(S_M0R)}")
    e(f"s_mov_b32 {sr(S_BLK)}, 1")
    e(f"s_mov_b32 {sr(S_HEAD)}, {sr(S_HEADN)}")
    e(f"s_mov_b32 {sr(S_QO)}, {sr(S_QON)}")
    stamp(e, o, sb2 + 1)
    tiles = list(range(n2))
    for m in mpass_mfmas(tiles): e(m)
    e("s_nop 7"); e("s_nop 1")
    for ins in mpass_valu(tiles): e(ins)
    emit_range(e, n2, "o", o, "A")

def emit_final(e, n, o):
    emit_bpart(e, n, o, False)
    e(f"v_and_b32 {vr(V_X)}, 15, v0")
    e(f"v_lshlrev_b32 {vr(V_T2)}, 8, {vr(V_X)}")
    e(f"v_bfe_u32 {vr(V_X)}, v0, 4, 1")
    e(f"v_lshl_add_u32 {vr(V_T2)}, {vr(V_X)}, 5, {vr(V_T2)}")
    e(f"v_lshrrev_b32 {vr(V_X)}, 5, v0")
    e(f"v_lshl_add_u32 {vr(V_T2)}, {vr(V_X)}, 4, {vr(V_T2)}")
    mf, last = bpart_mfmas(n)
    fill = []
    for t in range(n): fill += [(x, last[t]) for x in epi_tile(t, o, False)]
    merge(e, mf, fill, o.epi_per_gap)
    stamp(e, o, (1 if n == 5 else 7) + 4)

def gen(o):
    global OPT
    OPT = o
    _sched_cache.clear()
    e = Em()
    e.raw(f"; @launch grid=(256,1,1) block=(256,1,1) lds={LDS_BYTES}")
    e.raw('.amdgcn_target "amdgcn-amd-amdhsa--gfx950"')
    e.raw(".text")
    e.raw(f".globl {KNAME}")
    e.raw(".p2align 8")
    e.raw(f".type {KNAME},@function")
    e.label(KNAME)
    e("s_cmp_ge_u32 s2, 256")
    e("s_cbranch_scc1 L_exit")
    e("s_load_dwordx4 s[4:7], s[0:1], 0")
    e("s_load_dwordx4 s[8:11], s[0:1], 16")
    if o.diag: e(f"s_load_dwordx2 {sr(S_WS, 2)}, s[0:1], 40")
    stamp(e, o, 0)
    if o.spin_to:
        e("s_memrealtime s[88:89]"); e("s_memtime s[92:93]")
    if o.diag: e(f"s_memtime {sr(S_STAMP + 28, 2)}")
    e(f"v_lshrrev_b32 {vr(V_T0)}, 6, v0")
    e(f"v_and_b32 v0, 63, v0")
    e("s_nop 0")
    e(f"v_readfirstlane_b32 {sr(S_W)}, {vr(V_T0)}")
    e(f"s_and_b32 {sr(S_T0)}, s2, 7")
    e(f"s_lshr_b32 {sr(S_T1)}, s2, 3")
    e(f"s_and_b32 {sr(S_ROLE)}, {sr(S_T1)}, 1")
    e(f"s_andn2_b32 {sr(S_T1)}, {sr(S_T1)}, 1")
    e(f"s_lshl_b32 {sr(S_T0)}, {sr(S_T0)}, 5")
    e(f"s_add_u32 {sr(S_HEAD)}, {sr(S_T0)}, {sr(S_T1)}")
    e(f"s_mov_b32 {sr(S_BLK)}, 0")
    if o.prof: e("s_mov_b32 s92, 0")
    k = V_T0; g = V_T1; T = V_TMP
    e(f"v_lshrrev_b32 {vr(T)}, 3, v0")
    e(f"v_and_b32 {vr(T + 1)}, 7, v0")
    e(f"v_lshrrev_b32 {vr(T + 2)}, 1, {vr(T)}")
    e(f"v_lshlrev_b32 {vr(T + 3)}, 1, {vr(T + 2)}")
    e(f"s_cmp_lt_u32 {sr(S_W)}, 2")
    e(f"s_cselect_b64 vcc, -1, 0")
    for a1 in range(2):
        e(f"v_add_u32 {vr(T + 4)}, {4 * a1}, {vr(T + 2)}")
        e(f"v_cndmask_b32 {vr(T + 4)}, {vr(T + 3)}, {vr(T + 4)}, vcc")
        e(f"v_xor_b32 {vr(T + 4)}, {vr(T + 4)}, {vr(T + 1)}")
        e(f"v_lshlrev_b32 {vr(T + 4)}, 4, {vr(T + 4)}")
        e(f"v_lshl_add_u32 {vr(T + 4)}, {vr(T)}, 8, {vr(T + 4)}")
        e(f"v_add_u32 {vr(V_DMA + 2 * a1)}, {BIAS}, {vr(T + 4)}")
        e(f"v_mov_b32 {vr(V_DMA + 2 * a1 + 1)}, {vr(T + 4)}")
    e(f"v_and_b32 {vr(k)}, 15, v0")
    e(f"v_lshrrev_b32 {vr(g)}, 4, v0")
    e(f"v_lshlrev_b32 {vr(V_LANE16)}, 4, v0")
    e(f"v_lshrrev_b32 {vr(T)}, 3, {vr(k)}")
    e(f"v_lshlrev_b32 {vr(T)}, 11, {vr(T)}")
    e(f"v_and_b32 {vr(T + 1)}, 7, {vr(k)}")
    e(f"v_lshl_add_u32 {vr(T)}, {vr(T + 1)}, 7, {vr(T)}")
    e(f"v_bfe_u32 {vr(T + 1)}, {vr(k)}, 1, 3")
    for b in range(2):
        e(f"v_add_u32 {vr(T + 2)}, {4 * b}, {vr(g)}")
        e(f"v_xor_b32 {vr(T + 2)}, {vr(T + 2)}, {vr(T + 1)}")
        e(f"v_lshl_add_u32 {vr(V_AK + b)}, {vr(T + 2)}, 4, {vr(T)}")
    e(f"v_mul_u32_u24 {vr(V_OW)}, 272, {vr(k)}")
    e(f"v_lshl_add_u32 {vr(V_OW)}, {vr(g)}, 3, {vr(V_OW)}")
    e(f"v_bfe_u32 {vr(T)}, v0, 2, 2")
    e(f"v_and_b32 {vr(T + 1)}, 1, {vr(g)}")
    e(f"v_lshl_add_u32 {vr(T)}, {vr(T + 1)}, 2, {vr(T)}")
    e(f"v_lshrrev_b32 {vr(T + 1)}, 1, {vr(g)}")
    e(f"v_lshlrev_b32 {vr(T + 1)}, 11, {vr(T + 1)}")
    e(f"v_lshl_add_u32 {vr(T + 1)}, {vr(T)}, 7, {vr(T + 1)}")
    e(f"v_and_b32 {vr(T + 2)}, 1, v0")
    e(f"v_lshl_add_u32 {vr(T + 1)}, {vr(T + 2)}, 3, {vr(T + 1)}")
    e(f"v_add_u32 {vr(T + 1)}, {VREG}, {vr(T + 1)}")
    e(f"v_bfe_u32 {vr(T + 2)}, {vr(T)}, 1, 2")
    e(f"v_lshlrev_b32 {vr(T + 2)}, 1, {vr(T + 2)}")
    e(f"v_bfe_u32 {vr(T + 3)}, v0, 1, 1")
    for b in range(4):
        e(f"v_add_u32 {vr(T + 4)}, {2 * b}, {vr(T + 3)}")
        e(f"v_xor_b32 {vr(T + 4)}, {vr(T + 4)}, {vr(T + 2)}")
        e(f"v_lshl_add_u32 {vr(V_AV + b)}, {vr(T + 4)}, 4, {vr(T + 1)}")
    e(f"s_mov_b32 {sr(S_SCALE2)}, 0x{o.scale_bits:08x}")
    e(f"s_mov_b32 {sr(S_SCALE2 + 1)}, 0x{o.scale_bits:08x}")
    e(f"s_mov_b32 {sr(S_OOB)}, 0x{OOB:x}")
    e(f"v_mov_b32 {vr(T)}, 0x3f803f80")
    for i in range(4): e(f"v_accvgpr_write_b32 {ar(A_ONES + i)}, {vr(T)}")
    e(f"s_mul_i32 {sr(S_STG)}, {sr(S_W)}, {STGW}")
    e(f"s_add_u32 {sr(S_STG)}, {sr(S_STG)}, {STG0}")
    e(f"v_add_u32 {vr(V_OW)}, {sr(S_STG)}, {vr(V_OW)}")
    e("s_waitcnt lgkmcnt(0)")
    e(f"s_mov_b32 s12, s4"); e(f"s_mov_b32 s13, s5"); e(f"s_mov_b32 s14, {Q_BYTES}"); e(f"s_mov_b32 s15, 0x00020000")
    e(f"s_mov_b32 s20, s10"); e(f"s_mov_b32 s21, s11"); e(f"s_mov_b32 s22, {Q_BYTES}"); e(f"s_mov_b32 s23, 0x00020000")
    e(f"s_cmp_lt_u32 {sr(S_W)}, 2")
    e(f"s_cselect_b32 s16, s6, s8")
    e(f"s_cselect_b32 s17, s7, s9")
    e(f"s_sub_u32 s16, s16, {BIAS}")
    e(f"s_subb_u32 s17, s17, 0")
    e(f"s_add_u32 {sr(S_T0)}, {sr(S_HEAD)}, 2")
    e(f"s_mul_i32 s18, {sr(S_T0)}, {HEAD_KV}")
    e(f"s_add_u32 s18, s18, {BIAS}")
    e(f"s_mov_b32 s19, 0x00020000")
    e(f"s_and_b32 {sr(S_T0)}, {sr(S_W)}, 1")
    e(f"s_lshl_b32 {sr(S_T0)}, {sr(S_T0)}, 12")
    e(f"s_mul_i32 {sr(S_OFF0)}, {sr(S_HEAD)}, {HEAD_KV}")
    e(f"s_add_u32 {sr(S_OFF0)}, {sr(S_OFF0)}, {sr(S_T0)}")
    e(f"s_lshr_b32 {sr(S_T1)}, {sr(S_W)}, 1")
    e(f"s_mul_i32 {sr(S_T2)}, {sr(S_T1)}, {VREG}")
    e(f"s_add_u32 {sr(S_M0R)}, {sr(S_T0)}, {sr(S_T2)}")
    e(f"s_mul_i32 {sr(S_T1)}, {sr(S_T1)}, 8192")
    e(f"s_add_u32 {sr(S_M0P)}, {sr(S_M0R)}, {sr(S_T1)}")
    e(f"v_and_b32 {vr(V_X)}, 1, v0")
    e(f"v_cmp_eq_u32 vcc, 0, {vr(V_X)}")
    e(f"v_mov_b32 {vr(V_X)}, 0xeeeeeeee")
    e(f"v_mov_b32 {vr(V_X + 1)}, 0x44444444")
    e(f"v_cndmask_b32 {vr(V_IDX)}, {vr(V_X)}, {vr(V_X + 1)}, vcc")
    e(f"s_cmp_eq_u32 {sr(S_ROLE)}, 0")
    e("s_cbranch_scc0 L_role1")
    for (n1, n2, r) in ((5, 4, "r0"), (4, 5, "r1")):
        if r == "r1": e.label("L_role1")
        o.ctx = 1
        emit_cold(e, n1, o, r)
        emit_loop(e, n1, "q", o, f"{r}a")
        o.ctx = 15
        emit_trans(e, n1, n2, o)
        o.ctx = 2
        emit_loop(e, n2, "o", o, f"{r}b")
        emit_final(e, n2, o)
        e("s_branch L_done")
    e.label("L_done")
    if o.enc is not None:
        e("s_waitcnt vmcnt(0) lgkmcnt(0)")
        e("s_sub_u32 s94, s90, s88")
        e(f"s_lshl_b32 s94, s94, {o.enc_shift}")
        e("s_memrealtime s[90:91]"); e("s_waitcnt lgkmcnt(0)")
        e("s_add_u32 s88, s90, s94")
        e.label("L_spin2")
        e("s_memrealtime s[90:91]"); e("s_waitcnt lgkmcnt(0)")
        e("s_sub_u32 s91, s90, s88")
        e("s_cmp_lt_i32 s91, 0")
        e("s_cbranch_scc1 L_spin2")
    if o.spin_to:
        e("s_waitcnt vmcnt(0) lgkmcnt(0)")
        if o.spin_mode == "abs":
            e(f"s_add_u32 s88, s88, {o.spin_to}")
        else:
            e("s_memtime s[94:95]"); e("s_memrealtime s[90:91]"); e("s_waitcnt lgkmcnt(0)")
            e("s_sub_u32 s94, s94, s92")
            e(f"s_lshr_b32 s94, s94, {o.spin_to}")
            e("s_add_u32 s88, s90, s94")
        e.label("L_spin")
        e("s_memrealtime s[90:91]"); e("s_waitcnt lgkmcnt(0)")
        e("s_sub_u32 s91, s90, s88")
        e("s_cmp_lt_i32 s91, 0")
        e("s_cbranch_scc1 L_spin")
    if o.diag:
        e("s_waitcnt vmcnt(0) lgkmcnt(0)")
        stamp(e, o, 13)
        e(f"s_memtime {sr(S_STAMP + 30, 2)}")
        e("s_waitcnt lgkmcnt(0)")
        e(f"s_lshl_b32 {sr(S_T0)}, s2, 2")
        e(f"s_add_u32 {sr(S_T0)}, {sr(S_T0)}, {sr(S_W)}")
        e(f"s_lshl_b32 {sr(S_T0)}, {sr(S_T0)}, 7")
        e(f"s_mov_b32 s4, {sr(S_WS)}"); e(f"s_mov_b32 s5, {sr(S_WS + 1)}"); e("s_mov_b32 s6, 0x200000"); e("s_mov_b32 s7, 0x00020000")
        if o.prof:
            e(f"v_lshlrev_b32 v2, 2, v0")
            e(f"s_lshl_b32 s93, {sr(S_T0)}, 1")
            e(f"s_add_u32 s93, s93, 0x20000")
            e(f"v_add_u32 v2, s93, v2")
            e(f"buffer_store_dword {vr(V_PROF)}, v2, s[4:7], 0 offen")
            e("s_waitcnt vmcnt(0)")
        for i in range(32): e(f"v_writelane_b32 v1, {sr(S_STAMP + i)}, {i}") if i else e(f"v_mov_b32 v1, {sr(S_STAMP)}")
        e(f"v_lshlrev_b32 v2, 2, v0")
        e(f"v_add_u32 v2, {sr(S_T0)}, v2")
        e("v_cmp_gt_u32 vcc, 32, v0")
        e("s_and_saveexec_b64 s[86:87], vcc")
        e("buffer_store_dword v1, v2, s[4:7], 0 offen")
        e("s_waitcnt vmcnt(0)")
    e.label("L_exit")
    e("s_endpgm")
    e.raw('.section .rodata,"a"')
    e.raw(".p2align 6")
    e.raw(f".amdhsa_kernel {KNAME}")
    e.raw("  .amdhsa_next_free_vgpr 512")
    e.raw("  .amdhsa_next_free_sgpr 96")
    e.raw("  .amdhsa_accum_offset 256")
    e.raw("  .amdhsa_group_segment_fixed_size 0")
    e.raw("  .amdhsa_kernarg_size 48")
    e.raw("  .amdhsa_user_sgpr_count 2")
    e.raw("  .amdhsa_user_sgpr_kernarg_segment_ptr 1")
    e.raw("  .amdhsa_system_sgpr_workgroup_id_x 1")
    e.raw(".end_amdhsa_kernel")
    return e.text()

def default_opt():
    import struct, math
    o = Opt()
    o.pv_order = 'dt'; o.lat_exp = 3; o.ephase = 0; o.m_back = 0; o.v_start = 0; o.lat_ds = 6; o.dma_step = 3
    o.diag = False; o.diag_cyc = False
    o.epi_per_gap = 2; o.q_first = 5; o.exp_k0 = 0; o.enc = None; o.ctx = 0; o.enc_shift = 3; o.prof = False; o.spin_to = 0; o.spin_mode = "abs"; o.x_nobar = False; o.x_nodma = False; o.x_novm = False
    o.kv_pol = ""; o.q_pol = "nt"; o.o_pol = "sc0 sc1"; o.o1_pol = ""
    o.scale_bits = struct.unpack("<I", struct.pack("<f", (128 ** -0.5) * math.log2(math.e)))[0]
    return o

if __name__ == "__main__":
    ap = argparse.ArgumentParser()
    ap.add_argument("out")
    ap.add_argument("--diag", action="store_true")
    ap.add_argument("--cyc", action="store_true")
    ap.add_argument("--set", action="append", default=[])
    a = ap.parse_args()
    o = default_opt()
    o.diag = a.diag; o.diag_cyc = a.cyc
    for kv in a.set:
        k, v = kv.split("=")
        setattr(o, k, eval(v))
    open(a.out, "w").write(gen(o))
```

```python
import re

def regs_of(tok):
    tok = tok.strip()
    m = re.fullmatch(r"-?\|?([vas])(\d+)\|?", tok)
    if m: return [f"{m.group(1)}{m.group(2)}"]
    m = re.fullmatch(r"([vas])\[(\d+):(\d+)\]", tok)
    if m: return [f"{m.group(1)}{i}" for i in range(int(m.group(2)), int(m.group(3)) + 1)]
    if tok == "m0": return ["m0"]
    if tok == "vcc": return ["vcc"]
    if tok == "exec": return ["exec"]
    return []

TRANS = ("v_exp_f32", "v_rcp_f32", "v_log_f32", "v_rsq_f32", "v_sqrt_f32")
SCC_W = ("s_add_u32", "s_sub_u32", "s_addc_u32", "s_subb_u32", "s_and_b32", "s_or_b32", "s_xor_b32", "s_lshl_b32", "s_lshr_b32", "s_andn2_b32", "s_cmp")
SCC_R = ("s_addc_u32", "s_subb_u32", "s_cselect")

class I:
    def __init__(self, text, rd=(), wr=(), avail=0, prio=0, pin=False):
        self.text = text.strip()
        self.avail = avail
        self.prio = prio
        t = self.text
        op = t.split()[0]
        self.op = op
        args = [a.strip() for a in t[len(op):].split(",")] if len(t) > len(op) else []
        args2 = []
        for a in args:
            a = a.split(" offset")[0].split(" offen")[0].split(" op_sel")[0].strip()
            args2.append(a.split()[0] if a.split() else a)
        args = args2
        R, W = set(rd), set(wr)
        self.kind = "salu"
        if op.startswith("v_mfma"):
            self.kind = "mfma"; W |= set(regs_of(args[0]));
            for a in args[1:]: R |= set(regs_of(a))
        elif op.startswith("v_smfmac"):
            self.kind = "mfma"; W |= set(regs_of(args[0])); R |= set(regs_of(args[0]))
            for a in args[1:]: R |= set(regs_of(a))
        elif op.startswith("v_permlane") and "swap" in op:
            self.kind = "perm"
            for a in args: R |= set(regs_of(a)); W |= set(regs_of(a))
        elif op.startswith("v_cmp"):
            self.kind = "valu"; W |= set(regs_of(args[0]))
            for a in args[1:]: R |= set(regs_of(a))
        elif op.startswith("v_"):
            self.kind = "trans" if op in TRANS else "valu"
            W |= set(regs_of(args[0]))
            for a in args[1:]: R |= set(regs_of(a))
            if op.startswith("v_cndmask") and len(args) == 3: R.add("vcc")
        elif op.startswith("ds_read"):
            self.kind = "ds"; W |= set(regs_of(args[0])); R |= set(regs_of(args[1]))
        elif op.startswith("ds_write"):
            self.kind = "ds"
            for a in args: R |= set(regs_of(a))
        elif op.startswith("buffer_load"):
            self.kind = "vmem"
            if " lds" in t:
                for a in args: R |= set(regs_of(a))
                R.add("m0")
            else:
                W |= set(regs_of(args[0]))
                for a in args[1:]: R |= set(regs_of(a))
            R.add("vmq"); W.add("vmq")
        elif op.startswith("buffer_store"):
            self.kind = "vmst"
            for a in args: R |= set(regs_of(a))
            R.add("vmq"); W.add("vmq")
        elif op == "s_waitcnt":
            self.kind = "wait"
            if "vmcnt" in t: R.add("vmq"); W.add("vmq")
        elif op == "s_barrier":
            self.kind = "bar"
        elif op.startswith("s_"):
            self.kind = "salu"
            if op.startswith("s_cmp"):
                for a in args: R |= set(regs_of(a))
            else:
                W |= set(regs_of(args[0]))
                for a in args[1:]: R |= set(regs_of(a))
            if any(op.startswith(x) for x in SCC_W): W.add("scc")
            if any(op.startswith(x) for x in SCC_R): R.add("scc")
        else:
            raise ValueError(t)
        self.R, self.W = R, W
    def cost(self):
        return {"mfma": 8, "trans": 8}.get(self.kind, 4)

def schedule(prog, lds_pending=None, verbose=False, mfma_lat=44, ds_lat=110, no_pk_with_mfma=True):
    n = len(prog)
    preds = [[] for _ in range(n)]
    lastW = {}; readers = {}
    for i, x in enumerate(prog):
        for r in x.R:
            if r in lastW: preds[i].append((lastW[r], "raw", r))
        for r in x.W:
            if r in lastW: preds[i].append((lastW[r], "waw", r))
            for j in readers.get(r, []):
                if j != i: preds[i].append((j, "war", r))
        for r in x.R: readers.setdefault(r, []).append(i)
        for r in x.W:
            lastW[r] = i; readers[r] = []
    succ = [[] for _ in range(n)]
    for i in range(n):
        for (j, ty, r) in preds[i]: succ[j].append(i)
    def lat(j, i, ty):
        a, b = prog[j], prog[i]
        if ty == "raw":
            if a.kind == "mfma": return 16 if b.kind == "mfma" else mfma_lat
            if a.kind == "ds" and a.op.startswith("ds_read"): return ds_lat
            if a.kind == "trans": return 12
            return 8
        return 4
    cp = [0] * n
    for i in range(n - 1, -1, -1):
        best = 0
        for k in succ[i]:
            for (j, ty, r) in preds[k]:
                if j == i: best = max(best, lat(i, k, ty) + cp[k])
        cp[i] = best + prog[i].cost()
    done_t = [None] * n
    done_pos = [None] * n
    out = []
    t = 0; pos = 0
    last_mfma_t = -100
    ldsq = list(lds_pending or [])
    remaining = set(range(n))
    npred = [len(set(j for (j, _, _) in preds[i])) for i in range(n)]
    predset = [set(j for (j, _, _) in preds[i]) for i in range(n)]
    ready = [i for i in range(n) if not predset[i]]
    def emit(s, c=4):
        nonlocal t, pos
        out.append(s); t += c; pos += 1
    def needs(i):
        x = prog[i]
        mt = x.avail; mp = 0; lw = None
        for (j, ty, r) in preds[i]:
            a = prog[j]
            if ty == "raw" or ty == "waw":
                if a.kind == "mfma":
                    if x.kind == "mfma" and ty == "raw":
                        args = x.text.split(",")
                        isC = r in regs_of(args[0].split()[1]) and r in regs_of(args[3].strip()) if len(args) > 3 else False
                        if isC or x.op.startswith("v_smfmac") and r in regs_of(args[0].split()[1]): mt = max(mt, done_t[j] + 16)
                        else:
                            mt = max(mt, done_t[j] + mfma_lat); mp = max(mp, done_pos[j] + 3)
                    elif x.kind == "mfma" and ty == "waw":
                        mt = max(mt, done_t[j] + (16 if r in x.R else mfma_lat))
                    else:
                        mt = max(mt, done_t[j] + mfma_lat); mp = max(mp, done_pos[j] + 3)
                elif a.kind == "ds" and a.op.startswith("ds_read") and r[0] in "va" and r[1:].isdigit():
                    lw = j if lw is None else (j if ldsq_index(j) > ldsq_index(lw) else lw)
                    mt = max(mt, done_t[j] + ds_lat)
                elif a.kind in ("valu", "trans", "perm") and r[0] in "va" and r[1:].isdigit():
                    if x.kind == "mfma": mp = max(mp, done_pos[j] + 3)
                    elif x.kind == "perm": mp = max(mp, done_pos[j] + 3)
                    elif a.kind == "trans" and ty == "raw": mp = max(mp, done_pos[j] + 2)
                    elif x.kind in ("vmem", "vmst", "ds"): mp = max(mp, done_pos[j] + 1)
                elif r == "m0" and x.kind == "vmem": mp = max(mp, done_pos[j] + 2)
                elif r == "vcc" and a.kind in ("valu",): mp = max(mp, done_pos[j] + 3)
                elif a.kind == "salu" and r[0] == "s" and x.kind in ("valu", "trans", "vmem", "vmst"): mp = max(mp, done_pos[j] + 1)
                elif r.startswith("lds:") and a.kind == "ds" and x.kind in ("bar", "vmem"):
                    lw = j if lw is None else (j if ldsq_index(j) > ldsq_index(lw) else lw)
                elif r.startswith("lds:") and a.kind == "ds" and a.op.startswith("ds_write") and x.kind == "ds":
                    pass
            elif ty == "war":
                if a.kind == "vmst" and r[0] == "v": mp = max(mp, done_pos[j] + 3)
                if a.kind == "mfma" and x.kind in ("valu", "trans", "perm"):
                    args = a.text.split(",")
                    if len(args) > 3 and r in regs_of(args[3].strip()): mp = max(mp, done_pos[j] + 4); mt = max(mt, done_t[j] + 16)
                if r.startswith("lds:") and a.kind == "ds" and a.op.startswith("ds_read") and x.kind in ("bar", "vmem"):
                    lw = j if lw is None else (j if ldsq_index(j) > ldsq_index(lw) else lw)
        return mt, mp, lw
    def ldsq_index(j):
        return ldsq.index(j) if j in ldsq else -1
    while remaining:
        cands = []
        for i in ready:
            mt, mp, lw = needs(i)
            x = prog[i]
            if x.kind == "mfma": mt = max(mt, last_mfma_t + 16)
            if no_pk_with_mfma and x.op.startswith("v_pk_"): mt = max(mt, last_mfma_t + 24)
            extra = 0
            if lw is not None and lw in ldsq: extra = 1
            stall = max(0, mt - t) + 4 * max(0, mp - pos)
            cands.append((stall, -(cp[i] + x.prio), i, mt, mp, lw))
        cands.sort()
        z = [c for c in cands if c[0] == 0]
        pick = None
        if z:
            z.sort(key=lambda c: c[1])
            prevk = prog_kind_of(out)
            for c in z:
                k = prog[c[2]].kind
                if prevk == "valu" and k in ("ds", "vmem", "vmst") and len(z) > 1: continue
                pick = c; break
            if pick is None: pick = z[0]
            mf = [c for c in z if prog[c[2]].kind == "mfma"]
            if mf: pick = min(mf, key=lambda c: c[1])
        else:
            pick = cands[0]
        stall, _, i, mt, mp, lw = pick
        x = prog[i]
        if lw is not None and lw in ldsq:
            k = ldsq.index(lw)
            N = len(ldsq) - 1 - k
            emit(f"s_waitcnt lgkmcnt({min(N, 15)})")
            if N <= 15: del ldsq[: k + 1]
            else:
                del ldsq[: len(ldsq) - 15]
            t = max(t, done_t[lw] + ds_lat)
        while pos < mp:
            d = min(mp - pos, 8)
            out.append(f"s_nop {d - 1}"); t += 4 * d; pos += d
        if mt > t and x.kind != "wait" and x.kind != "bar":
            hard = 0
            for (j, ty, r) in preds[i]:
                if prog[j].kind == "mfma" and ty in ("raw", "waw"):
                    if x.kind == "mfma" and is_chain(x, r): continue
                    hard = max(hard, done_t[j] + mfma_lat)
            while hard > t:
                d = min((hard - t + 3) // 4, 8)
                out.append(f"s_nop {d - 1}"); t += 4 * d; pos += d
            t = max(t, mt)
        done_t[i] = t; done_pos[i] = pos
        if x.kind == "mfma": last_mfma_t = t
        if x.kind == "ds": ldsq.append(i)
        if x.op == "s_waitcnt" and "lgkmcnt(0)" in x.text: ldsq.clear()
        emit(x.text, x.cost())
        if x.kind == "wait": t = max(t, x.avail)
        remaining.discard(i); ready.remove(i)
        for k in succ[i]:
            predset[k].discard(i)
            if not predset[k] and k in remaining and k not in ready: ready.append(k)
    if verbose: print(f"; schedule: {n} instrs, model time {t} cycles")
    schedule.last_time = t
    schedule.last_ldsq = len(ldsq)
    return out

def is_chain(x, r):
    args = x.text.split(",")
    d = regs_of(args[0].split()[1])
    if x.op.startswith("v_smfmac"): return r in d
    return len(args) > 3 and r in d and regs_of(args[3].strip()) == d

def prog_kind_of(out):
    if not out: return None
    op = out[-1].split()[0]
    if op.startswith("v_mfma") or op.startswith("v_smfmac"): return "mfma"
    if op.startswith("v_"): return "valu"
    return "other"
```

```python
import sys, argparse, struct
from lsched import I, schedule

KNAME = "standalone__mha_softmax__near_ridge_kernel"
NHEAD = 256; SQ = 576; SK = 1024; D = 128
Q_BYTES = NHEAD * SQ * D * 2
HEAD_KV = SK * D * 2
HEAD_Q = SQ * D * 2
BIAS = 896
VREG = 32768
STG0 = 65536
STGW = 21760
DUMMY = STG0 + 4 * STGW
LDS_BYTES = DUMMY + 3072
OPITCH = 4352

S_QSRD = 12; S_KVSRD = 16; S_OSRD = 20
S_W = 24; S_OFF = 25; S_CNT = 26; S_END = 27; S_BLK = 28; S_HEAD = 29; S_QO = 30; S_QON = 31
S_M0R = 32; S_STG = 33; S_SSRC = 34; S_SDST = 35; S_DS = 36; S_DD = 37; S_XS = 38; S_XD = 39
S_T0 = 40; S_T1 = 41; S_T2 = 42; S_T3 = 43; S_SCALE2 = 44; S_OFF0 = 46; S_M0P = 47
S_STAMP = 48
S_WS = 80
S_ROLE = 82; S_OOB = 83; S_THR = 84; S_HEADN = 85; S_SAVE = 86
OOB = 0x7ff00000
V_T0 = 1; V_T1 = 2; V_T2 = 3; V_IDX = 1; V_PROF = 121; V_T4 = 108
V_AK = 4
V_AV = 6
V_DMA = 10
V_LANE16 = 14
V_OW = 15
V_NEGM = 16
V_S = 36
V_P = 76
V_TMP = 116
V_SD = 116
V_SA = 120
V_QD = 122
V_X = 124
V_O = 128
A_Q = 0; A_K = 80; A_V = 112; A_L = 144; A_ONES = 164; A_O4 = 168; A_SC = 200

def vr(b, n=1): return f"v{b}" if n == 1 else f"v[{b}:{b+n-1}]"
def ar(b, n=1): return f"a{b}" if n == 1 else f"a[{b}:{b+n-1}]"
def sr(b, n=1): return f"s{b}" if n == 1 else f"s[{b}:{b+n-1}]"
def rS(t, kt, r=None):
    b = V_S + t * 8 + kt * 4
    return vr(b, 4) if r is None else vr(b + r)
def rP(par, t, j=None):
    b = V_P + t * 8 + par * 4
    return vr(b, 4) if j is None else vr(b + j)
def rNEGM(t): return vr(V_NEGM + 4 * t, 4)
def rO(t, dt, r=None):
    if t < 4:
        b = V_O + t * 32 + dt * 4
        return vr(b, 4) if r is None else vr(b + r)
    b = A_O4 + dt * 4
    return ar(b, 4) if r is None else ar(b + r)
def rQ(t, c): return ar(A_Q + t * 16 + c * 4, 4)
def rK(kt, c): return ar(A_K + (kt * 4 + c) * 4, 4)
def rV(dt, h=None):
    b = A_V + dt * 4
    return ar(b, 4) if h is None else ar(b + 2 * h, 2)
def rL(t): return ar(A_L + 4 * t, 4)

class Opt: pass
OPT = None

class Em:
    def __init__(self): self.l = []
    def __call__(self, s): self.l.append("  " + s)
    def label(self, s): self.l.append(s + ":")
    def raw(self, s): self.l.append(s)
    def text(self): return "\n".join(self.l) + "\n"

def half_list(n, par, o):
    L = []
    for t in range(n):
        if par == 1: L.append(("SM", t, par))
        for kt in range(2):
            for c in range(4): L.append(("QK", t, kt, c, par))
    if o.pv_order == "dt":
        for dt in range(8):
            for t in range(n): L.append(("PV", t, dt, par))
    else:
        for t in range(n):
            for dt in range(8): L.append(("PV", t, dt, par))
    return L

_sched_cache = {}
def build_schedule(n, side, o):
    key = (n, side)
    if key in _sched_cache: return _sched_cache[key]
    h1 = half_list(n, 1, o); h0 = half_list(n, 0, o)
    mf = h1 + h0
    G1 = len(h1); G = len(mf)
    base = {1: 0, 0: G1}
    end = {1: G1, 0: G}
    idx = {m: i for i, m in enumerate(mf)}
    nE = 16 * n
    isE = [False] * G
    for k in range(nE): isE[(int(k * G / nE) + o.ephase) % G] = True
    assert sum(isE) == nE and not isE[G - 1], "ephase"
    gaps = [[] for _ in range(G)]
    cap = [0 if isE[g] else 2 for g in range(G)]
    order = [(idx[("QK", t, kt, 3, par)] + o.lat_exp, t, kt, par) for par in (1, 0) for t in range(n) for kt in range(2)]
    Elist = [g for g in range(G) if isE[g]]
    seq = [(rdy, t, kt, r, par) for (rdy, t, kt, par) in order for r in range(4)]
    exp_pos = None
    for k0 in range(nE):
        cand = {}
        ok = True
        for i, (rdy, t, kt, r, par) in enumerate(seq):
            kk = k0 + i
            pos = Elist[kk % nE] + G * (kk // nE)
            nxt = idx[("QK", t, kt, 0, 0)] if par == 1 else G + idx[("QK", t, kt, 0, 1)]
            if pos < rdy or pos >= nxt - 2: ok = False; break
            cand[(t, kt, r, par)] = pos
        if ok and k0 >= o.exp_k0:
            exp_pos = cand; break
    assert exp_pos is not None, "no feasible exp placement"
    for (t, kt, r, par), pos in exp_pos.items():
        gaps[pos % G].append(dict(k="exp", t=t, kt=kt, r=r, src=par, pos=pos, old=(pos >= G)))
    assert all(len(gaps[g]) == 1 for g in range(G) if isE[g])
    VALU = ("cvt", "vxor", "vadd")
    DS = ("dsK", "dsV", "dsS")
    def place(item, lo, hi, alone=False, rev=False):
        rng = range(lo, hi + 1) if not rev else range(hi, lo - 1, -1)
        for p in rng:
            g = p % G
            if isE[g]: continue
            if alone:
                if cap[g] == 2:
                    cap[g] = 0; gaps[g].append(item); item["pos"] = p; return p
                continue
            if cap[g] == 0: continue
            cap[g] -= 1
            if item["k"] not in VALU and item["k"] != "kwait" and any(x["k"] in VALU for x in gaps[g]): gaps[g].insert(0, item)
            else: gaps[g].append(item)
            item["pos"] = p
            return p
        raise RuntimeError(f"n={n} side={side}: cannot place {item} in [{lo},{hi}]")
    cap[G - 1] = 0; gaps[G - 1].append(dict(k="ctl", par=0))
    for (rdy, t, kt, par) in order:
        for jj in range(2):
            p = exp_pos[(t, kt, 2 * jj + 1, par)]
            it = dict(k="cvt", t=t, j=kt * 2 + jj, src=par)
            pp = place(it, p + 1, p + 10)
            it["old"] = pp >= G
            nxt = idx[("QK", t, kt, 0, 0)] if par == 1 else G + idx[("QK", t, kt, 0, 1)]
            assert pp < nxt
            if par == 1: fu = min(i for i, m in enumerate(mf) if m[0] == "PV" and m[1] == t and m[3] == 0)
            else: fu = G + idx[("SM", t, 1)]
            assert pp + 1 < fu, ("cvt deadline", t, kt, par, pp, fu)
            lo_ok = idx[("SM", t, 1)] if par == 1 else 0
            assert pp > lo_ok
    info = {}
    for par in (1, 0):
        B, E = base[par], end[par]
        last = E - 2 if par == 0 else E - 1
        firstPV = min(i for i, m in enumerate(mf) if m[0] == "PV" and m[3] == par)
        lastQK = max(i for i, m in enumerate(mf) if m[0] == "QK" and m[4] == par)
        mpos = None
        for p in range(firstPV - 1 - o.m_back, firstPV - 12, -1):
            if not isE[p] and cap[p] == 2:
                cap[p] = 0; gaps[p] += [dict(k="mwait", par=par), dict(k="bar", par=par)]; mpos = p; break
        assert mpos is not None
        p = B + o.v_start
        if side == "o": psS = place(dict(k="dsS", par=par), p, mpos - o.lat_ds)
        for dt in range(8):
            for h in range(2):
                p = max(p, place(dict(k="dsV", dt=dt, h=h, par=par), p, mpos - o.lat_ds))
        lastdsV = p
        lastK = {(kt, c): max(i for i, m in enumerate(mf) if m[0] == "QK" and m[2] == kt and m[3] == c and m[4] == par) for kt in range(2) for c in range(4)}
        pm0 = place(dict(k="m0", par=par), mpos + 1, last)
        p = pm0 + 1
        kp = mpos + 1
        kl = [(kt, c) for kt in range(2) for c in range(4)]
        for b in range(4):
            lastdma = place(dict(k="dma", b=b, par=par), p, last, alone=True)
            p = lastdma + o.dma_step
            for _ in range(2):
                kt, c = kl.pop(0)
                kp = place(dict(k="dsK", kt=kt, c=c, par=par), max(kp, lastK[(kt, c)]), last - o.lat_ds)
        place(dict(k="kwait", par=par), kp + o.lat_ds, last, rev=True)
        place(dict(k="soff", par=par), lastdma + 1, last)
        if side == "q":
            if par == 0: place(dict(k="m0tog", par=par), pm0 + 1, last)
            pm = place(dict(k="sm0", par=par), lastdma + 1, last - 1)
            place(dict(k="sdma", par=par), pm + 1, last, alone=True)
            if par == 1:
                q0 = place(dict(k="supd", i=0, par=par), B, pm - 1)
                q1 = place(dict(k="supd", i=1, par=par), B, pm - 1)
                place(dict(k="supd", i=2, par=par), q0 + 1, G - 2)
                place(dict(k="supd", i=3, par=par), q1 + 1, G - 2)
        elif side == "o":
            ps = place(dict(k="sst", par=par), mpos + 1, last, alone=True)
            if par == 0:
                place(dict(k="supd", i=0, par=par), ps + 1, last)
                place(dict(k="vadd", par=par), psS + 1, last)
        if par == 0:
            for i in range(4): place(dict(k="vxor", reg=V_AV + i, par=par), lastdsV + 1, last)
        else:
            for i in range(2): place(dict(k="vxor", reg=V_AK + i, par=par), kp + 1, last)
        info[par] = dict(mpos=mpos)
    _sched_cache[key] = (mf, gaps, cap, G1)
    return mf, gaps, cap, G1

def describe(n, side, o):
    mf, gaps, cap, G1 = build_schedule(n, side, o)
    for g, m in enumerate(mf):
        print(g, m, [(x["k"], x.get("t", ""), x.get("dt", x.get("kt", x.get("j", x.get("b", x.get("i", "")))))) for x in gaps[g]], "free", cap[g])
    print("free slots:", sum(cap))

def mfma_str(m, zeroC=False):
    if m[0] == "QK":
        _, t, kt, c, par = m
        C = rNEGM(t) if c == 0 else rS(t, kt)
        return f"v_mfma_f32_16x16x32_bf16 {rS(t, kt)}, {rK(kt, c)}, {rQ(t, c)}, {C}"
    if m[0] == "SM":
        t = m[1]
        return f"v_smfmac_f32_16x16x64_bf16 {rL(t)}, {ar(A_ONES, 4)}, {vr(V_P + 8 * t, 8)}, {vr(V_IDX)}"
    _, t, dt, par = m
    return f"v_mfma_f32_16x16x32_bf16 {rO(t, dt)}, {rV(dt)}, {rP(par, t)}, {'0' if zeroC else rO(t, dt)}"

def dma_str(b):
    return f"buffer_load_dwordx4 {vr(V_DMA + b)}, {sr(S_KVSRD, 4)}, {sr(S_OFF)} offen offset:{b * 1024} {OPT.kv_pol} lds"

def exp_str(x):
    rr = rS(x["t"], x["kt"], x["r"]); return f"v_exp_f32 {rr}, {rr}"
def cvt_str(x):
    t, j = x["t"], x["j"]; kt, jj = j >> 1, j & 1
    pb = x["src"] ^ 1
    return f"v_cvt_pk_bf16_f32 {rP(pb, t, j)}, {rS(t, kt, 2*jj)}, {rS(t, kt, 2*jj+1)}"

def emit_range(e, n, side, o, mode, vmn=None):
    mf, gaps, cap, G1 = build_schedule(n, side, o)
    G = len(mf)
    rng = {"pass": range(0, G), "it0": range(G1, G), "A": range(0, G1)}[mode]
    first = mode == "it0"; A = mode == "A"
    nside = 1 if side else 0
    if vmn is None: vmn = 2 * (4 + nside)
    for g in rng:
        m = mf[g]
        if not (A and m[0] != "QK"): e(mfma_str(m, zeroC=first))
        for x in gaps[g]:
            k = x["k"]
            par = x.get("par")
            if k == "exp":
                if A and x["src"] == 0: continue
                e(exp_str(x))
            elif k == "cvt":
                if A and x["src"] == 0: continue
                if A and m[0] != "QK": e("s_nop 0")
                e(cvt_str(x))
            elif k == "dsV":
                if A: continue
                dt, h = x["dt"], x["h"]
                e(f"ds_read_b64_tr_b16 {rV(dt, h)}, {vr(V_AV + (dt & 3))} offset:{((par + 1) & 1) * 8192 + h * 4096 + (dt >> 2) * 1024}")
            elif k == "dsS":
                if A or first: continue
                e(f"ds_read_b128 {vr(V_SD, 4)}, {vr(V_SA)} offset:{0 if par == 1 else 1088}")
            elif k == "dsK":
                kt, c = x["kt"], x["c"]
                e(f"ds_read_b128 {rK(kt, c)}, {vr(V_AK + (c & 1))} offset:{par * 8192 + kt * 4096 + (c >> 1) * 1024}")
            elif k == "kwait":
                e("s_waitcnt lgkmcnt(0)")
            elif k == "mwait":
                if A: continue
                e(f"s_waitcnt vmcnt({vmn}) lgkmcnt(0)" if not OPT.x_novm else "s_waitcnt lgkmcnt(0)")
            elif k == "bar":
                if A: continue
                if not OPT.x_nobar: e("s_barrier")
            elif k == "m0":
                if A: continue
                if side == "q":
                    if par == 0: e(f"s_xor_b32 m0, {sr(S_M0R)}, 0x2000")
                    else: e(f"s_mov_b32 m0, {sr(S_M0R)}")
                else:
                    e(f"s_xor_b32 m0, m0, 0x{0x2000 if par == 0 else 0x6000:x}")
            elif k == "m0tog":
                e(f"s_xor_b32 {sr(S_M0R)}, {sr(S_M0R)}, 0x4000")
            elif k == "dma":
                if A: continue
                if not OPT.x_nodma: e(dma_str(x["b"]))
            elif k == "soff":
                if A: continue
                e(f"s_add_u32 {sr(S_OFF)}, {sr(S_OFF)}, 8192")
            elif k == "sm0":
                if A: continue
                e(f"s_mov_b32 m0, {DUMMY if first else sr(S_SDST)}")
            elif k == "sdma":
                if A: continue
                a1 = 0 if par == 1 else 1
                e(f"buffer_load_dwordx4 {vr(V_QD + a1)}, {sr(S_QSRD, 4)}, {sr(S_OOB if first else S_SSRC)} offen offset:{a1 * 2048} {OPT.q_pol} lds")
            elif k == "sst":
                if A: continue
                e(f"buffer_store_dwordx4 {vr(V_SD, 4)}, {vr(V_LANE16)}, {sr(S_OSRD, 4)}, {sr(S_OOB if first else S_SSRC)} offen offset:{0 if par == 1 else 1024} {OPT.o1_pol}")
            elif k == "supd":
                if A or first: continue
                i = x["i"]
                if side == "q":
                    e([f"s_add_u32 {sr(S_SSRC)}, {sr(S_SSRC)}, {sr(S_DS)}", f"s_add_u32 {sr(S_SDST)}, {sr(S_SDST)}, {sr(S_DD)}",
                       f"s_xor_b32 {sr(S_DS)}, {sr(S_DS)}, {sr(S_XS)}", f"s_xor_b32 {sr(S_DD)}, {sr(S_DD)}, {sr(S_XD)}"][i])
                else:
                    e(f"s_add_u32 {sr(S_SSRC)}, {sr(S_SSRC)}, {sr(S_DS)}")
            elif k == "vadd":
                if A or first: continue
                e(f"v_add_u32 {vr(V_SA)}, {sr(S_DD)}, {vr(V_SA)}")
            elif k == "vxor":
                e(f"v_xor_b32 {vr(x['reg'])}, 0x4000, {vr(x['reg'])}")
            elif k == "ctl":
                pass
            else:
                raise ValueError(k)

def old_items(n, side, o):
    mf, gaps, cap, G1 = build_schedule(n, side, o)
    ex = [x for g in range(G1) for x in gaps[g] if x["k"] == "exp" and x["src"] == 0]
    cv = [x for g in range(G1) for x in gaps[g] if x["k"] == "cvt" and x["src"] == 0]
    return ex, cv

def stamp(e, o, i):
    if o.colddiag and i not in (0, 13): return
    if o.enc is not None:
        kind = {0: "start", 1: "qissue", 7: "qissue", 2: "bar", 8: "bar", 3: "loop0", 9: "loop0", 4: "loopend", 10: "loopend", 5: "epiend", 11: "epiend", 6: "qscaled", 13: "end"}.get(i)
        for which, reg in ((o.enc[0], 88), (o.enc[1], 90)):
            if which == (o.ctx, kind) or (kind == "start" and which[1] == "start"): e(f"s_memrealtime s[{reg}:{reg+1}]")
    if not o.diag: return
    if o.diag_cyc: e(f"s_memtime {sr(S_STAMP + 2 * i, 2)}")
    else: e(f"s_memrealtime {sr(S_STAMP + 2 * i, 2)}")

_uid = [0]
def uid():
    _uid[0] += 1
    return _uid[0]

def emit_ring_group(e):
    for b in range(4): e(dma_str(b))
    e(f"s_add_u32 {sr(S_OFF)}, {sr(S_OFF)}, 8192")

def emit_qo(e, n, head_sreg, dst):
    rowbase = 0 if n == 5 else 320
    e(f"s_mul_i32 {sr(dst)}, {sr(head_sreg)}, {HEAD_Q}")
    e(f"s_mul_i32 {sr(S_T0)}, {sr(S_W)}, {16 * n * 256}")
    e(f"s_add_u32 {sr(dst)}, {sr(dst)}, {sr(S_T0)}")
    e(f"s_add_u32 {sr(dst)}, {sr(dst)}, {rowbase * 256}")

def emit_qd_regs(e):
    T = V_X
    e(f"v_lshrrev_b32 {vr(T)}, 3, v0")
    e(f"v_and_b32 {vr(T + 1)}, 7, v0")
    e(f"v_lshrrev_b32 {vr(T + 2)}, 1, {vr(T)}")
    for a1 in range(2):
        e(f"v_add_u32 {vr(T + 3)}, {4 * a1}, {vr(T + 2)}")
        e(f"v_xor_b32 {vr(T + 3)}, {vr(T + 3)}, {vr(T + 1)}")
        e(f"v_lshlrev_b32 {vr(T + 3)}, 4, {vr(T + 3)}")
        e(f"v_lshl_add_u32 {vr(V_QD + a1)}, {vr(T)}, 8, {vr(T + 3)}")

def emit_q_dma_tile(e, t):
    for hh in range(2):
        e(f"s_add_u32 m0, {sr(S_STG)}, {t * 4096 + hh * 1024}")
        e(f"s_add_u32 {sr(S_T2)}, {sr(S_QO)}, {t * 4096 + hh * 128}")
        for a1 in range(2):
            e(f"buffer_load_dwordx4 {vr(V_QD + a1)}, {sr(S_QSRD, 4)}, {sr(S_T2)} offen offset:{a1 * 2048} {OPT.q_pol} lds")

def qscale_tile(t, o, pk, AQ0, AQ1, R):
    reads = [f"ds_read_b128 {vr(R + 4 * c, 4)}, {vr(AQ0 if (c & 1) == 0 else AQ1)} offset:{t * 4096 + (c >> 1) * 1024}" for c in range(4)]
    chains = []
    for i in range(16):
        src = R + i
        t0 = V_TMP + (i % 4) * 2
        ch = [f"v_lshlrev_b32 {vr(t0)}, 16, {vr(src)}", f"v_and_b32 {vr(t0 + 1)}, 0xffff0000, {vr(src)}"]
        if pk: ch.append(f"v_pk_mul_f32 {vr(t0, 2)}, {vr(t0, 2)}, {sr(S_SCALE2, 2)}")
        else: ch += [f"v_mul_f32 {vr(t0)}, {sr(S_SCALE2)}, {vr(t0)}", f"v_mul_f32 {vr(t0 + 1)}, {sr(S_SCALE2)}, {vr(t0 + 1)}"]
        ch += [f"v_cvt_pk_bf16_f32 {vr(t0)}, {vr(t0)}, {vr(t0 + 1)}", f"v_accvgpr_write_b32 {ar(A_Q + t * 16 + i)}, {vr(t0)}"]
        chains.append(ch)
    out = []
    for g in range(4):
        ch = chains[4 * g:4 * g + 4]
        for s in range(len(ch[0])):
            for j in range(4): out.append(ch[j][s])
    return reads, out

def mpass_mfmas(tiles):
    L = []
    for t in tiles:
        for c in range(4):
            C = "0" if c == 0 else rS(t, 0)
            L.append(f"v_mfma_f32_16x16x32_bf16 {rS(t, 0)}, {rK(0, c)}, {rQ(t, c)}, {C}")
    return L

def mpass_valu(tiles):
    X = lambda t: V_X + 2 * (t & 1) if len(tiles) <= 2 else V_P + 8 * t + 4
    Y = lambda t: X(t) + 1
    L = []
    for t in tiles: L.append(f"v_max3_f32 {vr(X(t))}, {rS(t, 0, 0)}, {rS(t, 0, 1)}, {rS(t, 0, 2)}")
    for t in tiles: L.append(f"v_max_f32 {vr(X(t))}, {vr(X(t))}, {rS(t, 0, 3)}")
    for t in tiles: L.append(f"v_mov_b32 {vr(Y(t))}, {vr(X(t))}")
    L.append("s_nop 1")
    for t in tiles: L.append(f"v_permlane32_swap_b32 {vr(X(t))}, {vr(Y(t))}")
    L.append("s_nop 1")
    for t in tiles: L.append(f"v_max_f32 {vr(X(t))}, {vr(X(t))}, {vr(Y(t))}")
    for t in tiles: L.append(f"v_mov_b32 {vr(Y(t))}, {vr(X(t))}")
    L.append("s_nop 1")
    for t in tiles: L.append(f"v_permlane16_swap_b32 {vr(X(t))}, {vr(Y(t))}")
    L.append("s_nop 1")
    for t in tiles: L.append(f"v_max_f32 {vr(X(t))}, {vr(X(t))}, {vr(Y(t))}")
    for t in tiles:
        for i in range(4): L.append(f"v_sub_f32 {vr(V_NEGM + 4 * t + i)}, 0, {vr(X(t))}")
    L.append("s_nop 1")
    return L

def epi_tile(t, o, to_lds, pk=False):
    L = []
    R = V_X + 3
    L.append(f"v_accvgpr_read_b32 {vr(R)}, {ar(A_L + 4 * t)}")
    L.append(f"v_accvgpr_read_b32 {vr(R - 1)}, {ar(A_L + 4 * t + 1)}")
    if not to_lds: L.append(f"s_add_u32 {sr(S_T1)}, {sr(S_QO)}, {t * 4096}")
    L.append(f"v_add_f32 {vr(R)}, {vr(R)}, {vr(R - 1)}")
    L.append(f"v_rcp_f32 {vr(R)}, {vr(R)}")
    L.append("s_nop 0")
    if pk: L.append(f"v_mov_b32 {vr(R - 1)}, {vr(R)}")
    for dp in range(4):
        B = V_S + ((t * 4 + dp) % 4) * 4
        for half in range(2):
            dt = 2 * dp + half
            T = V_TMP + half * 4
            if t >= 4:
                for r in range(4): L.append(f"v_accvgpr_read_b32 {vr(T + r)}, {rO(t, dt, r)}")
                src = lambda r: vr(T + r); src2 = lambda r: vr(T + r, 2)
            else:
                b0 = V_O + t * 32 + dt * 4
                src = lambda r: vr(b0 + r); src2 = lambda r: vr(b0 + r, 2)
            if pk:
                for r in (0, 2): L.append(f"v_pk_mul_f32 {vr(T + r, 2)}, {src2(r)}, {vr(R - 1, 2)}")
            else:
                for r in range(4): L.append(f"v_mul_f32 {vr(T + r)}, {src(r)}, {vr(R)}")
            L.append(f"v_cvt_pk_bf16_f32 {vr(B + 2 * half)}, {vr(T)}, {vr(T + 1)}")
            L.append(f"v_cvt_pk_bf16_f32 {vr(B + 2 * half + 1)}, {vr(T + 2)}, {vr(T + 3)}")
            if to_lds:
                L.append(f"ds_write_b64 {vr(V_OW)}, {vr(B + 2 * half, 2)} offset:{t * OPITCH + dt * 32}")
        if not to_lds:
            L.append("s_nop 1")
            L.append(f"v_permlane16_swap_b32 {vr(B)}, {vr(B + 2)}")
            L.append(f"v_permlane16_swap_b32 {vr(B + 1)}, {vr(B + 3)}")
            L.append(f"buffer_store_dwordx4 {vr(B, 4)}, {vr(V_T2)}, {sr(S_OSRD, 4)}, {sr(S_T1)} offen offset:{dp * 64} {OPT.o_pol}")
    return L

def emit_bpart(e, n, o, with_stream):
    side = "q" if with_stream else "o"
    ex, cv = old_items(n, side, o)
    for x in ex: e(exp_str(x))
    for dt in range(8):
        for h in range(2):
            e(f"ds_read_b64_tr_b16 {rV(dt, h)}, {vr(V_AV + (dt & 3))} offset:{h * 4096 + (dt >> 2) * 1024}")
    for x in cv: e(cvt_str(x))
    if with_stream:
        e(f"s_waitcnt vmcnt(10) lgkmcnt(0)")
        e("s_barrier")
        e(f"s_mov_b32 m0, {sr(S_M0R)}")
        e("s_nop 0")
        emit_ring_group(e)
        e(f"s_mov_b32 m0, {DUMMY}")
        e("s_nop 0")
        e(f"buffer_load_dwordx4 {vr(V_LANE16)}, {sr(S_QSRD, 4)}, {sr(S_OOB)} offen lds")
    else:
        e("s_waitcnt lgkmcnt(0)")
    e("s_nop 0")

def bpart_mfmas(n):
    mf = []; last = []
    for t in range(n):
        mf.append(mfma_str(("SM", t, 1)))
        for dt in range(8): mf.append(mfma_str(("PV", t, dt, 1)))
        last.append(len(mf) - 1)
    return mf, last

def merge(e, mf, fill, per_gap, lag=3):
    i = 0
    for j, m in enumerate(mf):
        e(m)
        k = 0
        while i < len(fill) and k < per_gap:
            ins, dep = fill[i]
            if dep is not None and j < dep + lag - 1: break
            e(ins); i += 1; k += 1
    if i < len(fill) and any(d is not None for _, d in fill[i:]):
        e("s_nop 7"); e("s_nop 1")
    while i < len(fill):
        e(fill[i][0]); i += 1

def emit_lzero(e, n):
    for i in range(4 * n): e(f"v_accvgpr_write_b32 {ar(A_L + i)}, 0")

def x_items_tile(n, side, o, t):
    mf, gaps, cap, G1 = build_schedule(n, side, o)
    ex = sorted([x for g in range(G1) for x in gaps[g] if x["k"] == "exp" and x["src"] == 1 and x["t"] == t], key=lambda x: x["pos"])
    cv = sorted([x for g in range(G1) for x in gaps[g] if x["k"] == "cvt" and x["src"] == 1 and x["t"] == t], key=lambda x: x["pos"])
    return ex, cv

def emit_tile_prologue(e, n, side, o, t):
    e("s_nop 1")
    for m in mpass_mfmas([t]): e(m)
    e("s_nop 7"); e("s_nop 1")
    for ins in mpass_valu([t]): e(ins)
    for kt in range(2):
        for c in range(4): e(mfma_str(("QK", t, kt, c, 1)))
    ex, cv = x_items_tile(n, side, o, t)
    if ex and any(x["kt"] == 1 for x in ex[:4]): pass
    e("s_nop 3")
    n0 = sum(1 for x in ex if x["kt"] == 0)
    for i, x in enumerate(ex):
        if x["kt"] == 1 and i == n0 and n0 < 4: e("s_nop 7")
        e(exp_str(x))
    e("s_nop 0")
    for x in cv: e(cvt_str(x))

def emit_kread(e, imm):
    for kt in range(2):
        for c in range(4):
            e(f"ds_read_b128 {rK(kt, c)}, {vr(V_AK + (c & 1))} offset:{imm + kt * 4096 + (c >> 1) * 1024}")

def emit_loop(e, n, side, o, name):
    sb = 1 if n == 5 else 7
    stamp(e, o, sb + 2)
    n_other = 9 - n
    e(f"s_add_u32 {sr(S_CNT)}, {sr(S_OFF)}, {(4 * n_other + 1) * 8192}")
    e(f"s_add_u32 {sr(S_END)}, {sr(S_OFF)}, {31 * 8192}")
    emit_range(e, n, side, o, "it0", vmn=(9 if side == "q" else 10))
    e.label(f"L_odd_{name}")
    emit_range(e, n, side, o, "pass")
    if o.prof:
        e("s_memtime s[88:89]"); e("s_memrealtime s[90:91]"); e("s_waitcnt lgkmcnt(0)")
        e("s_lshl_b64 exec, 1, s92"); e("s_add_u32 s93, s92, 32"); e(f"v_mov_b32 {vr(V_PROF)}, s88"); e("s_lshl_b64 exec, 1, s93"); e("s_add_u32 s92, s92, 1"); e(f"v_mov_b32 {vr(V_PROF)}, s90"); e("s_mov_b64 exec, -1"); e("s_nop 4")
    e(f"s_cmp_eq_u32 {sr(S_OFF)}, {sr(S_CNT)}")
    e(f"s_cbranch_scc0 L_odd_{name}")
    e(f"s_cmp_eq_u32 {sr(S_CNT)}, {sr(S_END)}")
    e(f"s_cbranch_scc1 L_exit_{name}")
    e(f"s_mov_b32 {sr(S_CNT)}, {sr(S_END)}")
    e(f"s_mov_b32 {sr(S_SSRC)}, {sr(S_OOB)}")
    e(f"s_mov_b32 {sr(S_DS)}, 0")
    e(f"s_mov_b32 {sr(S_DD)}, 0")
    if side == "q":
        e(f"s_mov_b32 {sr(S_SDST)}, {DUMMY}")
        e(f"s_mov_b32 {sr(S_XS)}, 0")
        e(f"s_mov_b32 {sr(S_XD)}, 0")
    e(f"s_branch L_odd_{name}")
    e.label(f"L_exit_{name}")
    stamp(e, o, sb + 3)

def emit_sched(e, prog, tag=""):
    out = schedule(prog)
    for s in out: e(s)

def p_qscale(t, D1, D2):
    P = []
    AH, AL = A_SC, A_SC + 6
    for c in range(4):
        B = rQ(t, c)
        P.append(I(f"v_mfma_f32_16x16x32_bf16 {vr(D1, 4)}, {ar(AH + 2, 4)}, {B}, 0"))
        P.append(I(f"v_mfma_f32_16x16x32_bf16 {vr(D2, 4)}, {ar(AH, 4)}, {B}, 0"))
        P.append(I(f"v_mfma_f32_16x16x32_bf16 {vr(D1, 4)}, {ar(AL + 2, 4)}, {B}, {vr(D1, 4)}"))
        P.append(I(f"v_mfma_f32_16x16x32_bf16 {vr(D2, 4)}, {ar(AL, 4)}, {B}, {vr(D2, 4)}"))
        for j, D in enumerate((D1, D2)):
            P.append(I(f"v_cvt_pk_bf16_f32 {vr(D)}, {vr(D)}, {vr(D + 1)}"))
            P.append(I(f"v_cvt_pk_bf16_f32 {vr(D + 2)}, {vr(D + 2)}, {vr(D + 3)}"))
            P.append(I(f"v_accvgpr_write_b32 {ar(A_Q + t * 16 + c * 4 + 2 * j)}, {vr(D)}"))
            P.append(I(f"v_accvgpr_write_b32 {ar(A_Q + t * 16 + c * 4 + 2 * j + 1)}, {vr(D + 2)}"))
    return P

def p_qraw(t, AQ0, AQ1, dep):
    return [I(f"ds_read_b128 {rQ(t, c)}, {vr(AQ0 if (c & 1) == 0 else AQ1)} offset:{t * 4096 + (c >> 1) * 1024}", rd=dep) for c in range(4)]

def p_tile_prologue(n, side, o, t, X):
    P = [I(m) for m in mpass_mfmas([t])]
    Y = X + 1
    P += [I(f"v_max3_f32 {vr(X)}, {rS(t, 0, 0)}, {rS(t, 0, 1)}, {rS(t, 0, 2)}"), I(f"v_max_f32 {vr(X)}, {vr(X)}, {rS(t, 0, 3)}"),
          I(f"v_mov_b32 {vr(Y)}, {vr(X)}"), I(f"v_permlane32_swap_b32 {vr(X)}, {vr(Y)}"), I(f"v_max_f32 {vr(X)}, {vr(X)}, {vr(Y)}"),
          I(f"v_mov_b32 {vr(Y)}, {vr(X)}"), I(f"v_permlane16_swap_b32 {vr(X)}, {vr(Y)}"), I(f"v_max_f32 {vr(X)}, {vr(X)}, {vr(Y)}")]
    for i in (3, 2, 1, 0): P.append(I(f"v_sub_f32 {vr(V_NEGM + 4 * t + i)}, 0, {vr(X)}"))
    for kt in range(2):
        for c in range(4): P.append(I(mfma_str(("QK", t, kt, c, 1))))
    ex, cv = x_items_tile(n, side, o, t)
    for x in ex: P.append(I(exp_str(x)))
    for x in cv: P.append(I(cvt_str(x)))
    return P

def p_ring_group(m0expr, dep=(), prio=0):
    P = [I(m0expr, prio=prio)]
    for b in range(4): P.append(I(dma_str(b), rd=dep, prio=prio))
    P.append(I(f"s_add_u32 {sr(S_OFF)}, {sr(S_OFF)}, 8192"))
    return P

def p_q_dma(t, prio=0):
    P = []
    for hh in range(2):
        P.append(I(f"s_add_u32 m0, {sr(S_STG)}, {t * 4096 + hh * 1024}", prio=prio))
        P.append(I(f"s_add_u32 {sr(S_T2 + hh)}, {sr(S_QO)}, {t * 4096 + hh * 128}", prio=prio))
        for a1 in range(2):
            P.append(I(f"buffer_load_dwordx4 {vr(V_QD + a1)}, {sr(S_QSRD, 4)}, {sr(S_T2 + hh)} offen offset:{a1 * 2048} {OPT.q_pol} lds", prio=prio))
    return P

def emit_cold(e, n, o, name):
    sb = 1 if n == 5 else 7
    n2 = 9 - n
    emit_qo(e, n, S_HEAD, S_QO)
    e(f"s_mov_b32 {sr(S_OFF)}, {sr(S_OFF0)}")
    emit_qd_regs(e)
    HI = 100000
    P = []
    P += p_ring_group(f"s_mov_b32 m0, {sr(S_M0P)}", prio=HI)
    P += p_q_dma(0, HI) + p_q_dma(1, HI)
    P.append(I(f"v_add_u32 {vr(V_T1)}, {sr(S_STG)}, {vr(V_AK)}"))
    P.append(I(f"v_add_u32 {vr(V_T2)}, {sr(S_STG)}, {vr(V_AK + 1)}"))
    T0 = o.c_t0; DT = o.c_dt
    P.append(I("s_waitcnt vmcnt(8)", wr=["g0ok"], avail=T0))
    P.append(I("s_barrier", rd=["g0ok"], wr=["lds:k0"], avail=T0))
    for kt in range(2):
        for c in range(4):
            P.append(I(f"ds_read_b128 {rK(kt, c)}, {vr(V_AK + (c & 1))} offset:{kt * 4096 + (c >> 1) * 1024}", rd=["lds:k0"]))
    later = [("q", t) for t in range(2, n)] + [("g", 1), ("g", 2)]
    for t in range(n):
        kind, idx = later[t]
        if kind == "q": P += p_q_dma(idx, HI)
        else: P += p_ring_group(f"s_add_u32 m0, {sr(S_M0P)}, {idx * 8192}", prio=HI)
        P.append(I("s_waitcnt vmcnt(8)", wr=[f"qok{t}"], avail=T0 + 200 + t * DT))
        P += p_qraw(t, V_T1, V_T2, [f"qok{t}"])
        P += p_qscale(t, V_O + 8 * t, V_O + 8 * t + 4)
        P += p_tile_prologue(n, "q", o, t, V_O + 64 + 2 * t)
    rest = later[n:]
    for i in range(4 * n): P.append(I(f"v_accvgpr_write_b32 {ar(A_L + i)}, 0"))
    emit_sched(e, P, f"cold n={n}")
    stamp(e, o, sb)
    for kind, idx in rest:
        assert kind == "g"
        e(f"s_add_u32 m0, {sr(S_M0P)}, {idx * 8192}"); e("s_nop 0")
        emit_ring_group(e)
    u = uid()
    e(f"s_cmp_lt_u32 {sr(S_W)}, 2")
    e(f"s_cbranch_scc0 L_nok_{u}")
    e(f"s_add_u32 m0, {sr(S_M0P)}, {3 * 8192}"); e("s_nop 0")
    emit_ring_group(e)
    e.label(f"L_nok_{u}")
    e(f"s_add_u32 {sr(S_HEADN)}, {sr(S_HEAD)}, 1")
    emit_qo(e, n2, S_HEADN, S_QON)
    e(f"s_sub_u32 {sr(S_SSRC)}, {sr(S_QON)}, 3968")
    e(f"s_sub_u32 {sr(S_SDST)}, {sr(S_STG)}, 3072")
    e(f"s_mov_b32 {sr(S_DS)}, 3968"); e(f"s_mov_b32 {sr(S_XS)}, {128 ^ 3968}")
    e(f"s_mov_b32 {sr(S_DD)}, 3072"); e(f"s_mov_b32 {sr(S_XD)}, {1024 ^ 3072}")
    e("s_waitcnt vmcnt(8) lgkmcnt(0)")
    e("s_barrier")
    stamp(e, o, sb + 1)
    e(f"s_mov_b32 m0, {sr(S_M0R)}")
    emit_kread(e, 8192)
    emit_ring_group(e)
    e(f"s_mov_b32 m0, {DUMMY}")
    for i in range(2): e(f"v_xor_b32 {vr(V_AK + i)}, 0x4000, {vr(V_AK + i)}")
    e(f"buffer_load_dwordx4 {vr(V_LANE16)}, {sr(S_QSRD, 4)}, {sr(S_OOB)} offen lds")
    e("s_waitcnt lgkmcnt(0)")

def p_bhead(n, o, with_stream):
    side = "q" if with_stream else "o"
    ex, cv = old_items(n, side, o)
    P = [I(exp_str(x)) for x in ex]
    for dt in range(8):
        for h in range(2):
            P.append(I(f"ds_read_b64_tr_b16 {rV(dt, h)}, {vr(V_AV + (dt & 3))} offset:{h * 4096 + (dt >> 2) * 1024}", rd=["lds:v31"], prio=5000))
    P += [I(cvt_str(x)) for x in cv]
    if with_stream:
        P.append(I("s_waitcnt vmcnt(10)", wr=["m31a"], prio=5000))
        P.append(I("s_barrier", rd=["m31a"], wr=["lds:v31"], prio=5000))
        P.append(I(f"s_mov_b32 m0, {sr(S_M0R)}", rd=["lds:v31"], prio=3000))
        for b in range(4): P.append(I(dma_str(b), rd=["lds:v31"], prio=3000))
        P.append(I(f"s_add_u32 {sr(S_OFF)}, {sr(S_OFF)}, 8192"))
        P.append(I(f"s_mov_b32 m0, {DUMMY}"))
        P.append(I(f"buffer_load_dwordx4 {vr(V_LANE16)}, {sr(S_QSRD, 4)}, {sr(S_OOB)} offen lds"))
        P.append(I(f"s_mov_b32 m0, {sr(S_M0R)}"))
    for t in range(n):
        P.append(I(mfma_str(("SM", t, 1))))
        for dt in range(8): P.append(I(mfma_str(("PV", t, dt, 1))))
    return P

def p_epi_head(t, R, Rt):
    return [I(f"v_accvgpr_read_b32 {vr(R)}, {ar(A_L + 4 * t)}"), I(f"v_accvgpr_read_b32 {vr(Rt)}, {ar(A_L + 4 * t + 1)}"),
            I(f"v_add_f32 {vr(R)}, {vr(R)}, {vr(Rt)}"), I(f"v_rcp_f32 {vr(R)}, {vr(R)}")]

def p_epi_lds(t, R, Rt, T4, stgdep):
    P = p_epi_head(t, R, Rt)
    for dt in range(8):
        if t >= 4:
            b = T4 + 4 * (dt & 1)
            for r in range(4): P.append(I(f"v_accvgpr_read_b32 {vr(b + r)}, {rO(t, dt, r)}"))
        else: b = V_O + t * 32 + dt * 4
        for r in range(4): P.append(I(f"v_mul_f32 {vr(b + r)}, {vr(b + r)}, {vr(R)}"))
        P.append(I(f"v_cvt_pk_bf16_f32 {vr(b)}, {vr(b)}, {vr(b + 1)}"))
        P.append(I(f"v_cvt_pk_bf16_f32 {vr(b + 1)}, {vr(b + 2)}, {vr(b + 3)}"))
        P.append(I(f"ds_write_b64 {vr(V_OW)}, {vr(b, 2)} offset:{t * OPITCH + dt * 32}", wr=stgdep))
    return P

def emit_trans(e, n1, n2, o):
    sb1 = 1 if n1 == 5 else 7
    sb2 = 1 if n2 == 5 else 7
    P = []
    P.append(I(f"v_add_u32 {vr(V_T1)}, {sr(S_STG)}, {vr(V_AK)}", prio=9000))
    P.append(I(f"v_add_u32 {vr(V_T2)}, {sr(S_STG)}, {vr(V_AK + 1)}", prio=9000))
    for t in range(n2):
        for x in p_qraw(t, V_T1, V_T2, [f"lds:stg{t}"]): x.prio = 4000; P.append(x)
    P += p_bhead(n1, o, True)
    for t in range(n2):
        P += p_qscale(t, V_S + 8 * t, V_S + 8 * t + 4)
        P += p_tile_prologue(n2, "o", o, t, V_NEGM + 4 * t)
    for t in range(n1):
        P += p_epi_lds(t, V_TMP + t, V_TMP + 5 + (t & 1), V_T4, [f"lds:stg{t}", f"lds:stg{t + 1}"])
    for i in range(4 * n2): P.append(I(f"v_accvgpr_write_b32 {ar(A_L + i)}, 0"))
    for kt in range(2):
        for c in range(4):
            P.append(I(f"ds_read_b128 {rK(kt, c)}, {vr(V_AK + (c & 1))} offset:{8192 + kt * 4096 + (c >> 1) * 1024}", rd=["lds:v31"]))
    for i in range(2): P.append(I(f"v_xor_b32 {vr(V_AK + i)}, 0x4000, {vr(V_AK + i)}"))
    P.append(I(f"s_mov_b32 {sr(S_SSRC)}, {sr(S_QO)}"))
    P.append(I(f"s_mov_b32 {sr(S_DS)}, 2048")); P.append(I(f"s_mov_b32 {sr(S_DD)}, 2176"))
    P.append(I(f"s_mov_b32 {sr(S_BLK)}, 1"))
    P.append(I(f"s_mov_b32 {sr(S_HEAD)}, {sr(S_HEADN)}"))
    P.append(I(f"s_mov_b32 {sr(S_QO)}, {sr(S_QON)}"))
    emit_sched(e, P, f"trans {n1}->{n2}")
    stamp(e, o, sb1 + 4)
    e(f"v_lshrrev_b32 {vr(V_X)}, 4, v0")
    e(f"v_mul_u32_u24 {vr(V_X)}, 272, {vr(V_X)}")
    e(f"v_and_b32 {vr(V_X + 1)}, 15, v0")
    e(f"v_lshl_add_u32 {vr(V_X)}, {vr(V_X + 1)}, 4, {vr(V_X)}")
    e(f"v_add_u32 {vr(V_SA)}, {sr(S_STG)}, {vr(V_X)}")
    e("s_waitcnt lgkmcnt(0)")
    stamp(e, o, sb2 + 1)

def emit_final(e, n, o):
    P = p_bhead(n, o, False)
    if o.final_lds:
        for t in range(n):
            P += p_epi_lds(t, V_TMP + t, V_TMP + 5 + (t & 1), V_T4, [f"lds:o{t}"])
        P.append(I(f"v_lshrrev_b32 {vr(V_T1)}, 4, v0", prio=9000))
        P.append(I(f"v_mul_u32_u24 {vr(V_T1)}, 272, {vr(V_T1)}", prio=9000))
        P.append(I(f"v_and_b32 {vr(V_T2)}, 15, v0", prio=9000))
        P.append(I(f"v_lshl_add_u32 {vr(V_T1)}, {vr(V_T2)}, 4, {vr(V_T1)}", prio=9000))
        P.append(I(f"v_add_u32 {vr(V_T1)}, {sr(S_STG)}, {vr(V_T1)}", prio=9000))
        for t in range(n):
            for j in range(4):
                k = 4 * t + j
                D = V_S + 4 * (k % 8)
                P.append(I(f"ds_read_b128 {vr(D, 4)}, {vr(V_T1)} offset:{k * 1088}", rd=[f"lds:o{t}"]))
                if j == 0: P.append(I(f"s_add_u32 {sr(S_T0 + (t & 1))}, {sr(S_QO)}, {t * 4096}"))
                P.append(I(f"buffer_store_dwordx4 {vr(D, 4)}, {vr(V_LANE16)}, {sr(S_OSRD, 4)}, {sr(S_T0 + (t & 1))} offen offset:{j * 1024} {OPT.o_pol}"))
    else:
        P.append(I(f"v_and_b32 {vr(V_X)}, 15, v0", prio=9000))
        P.append(I(f"v_lshlrev_b32 {vr(V_T2)}, 8, {vr(V_X)}", prio=9000))
        P.append(I(f"v_bfe_u32 {vr(V_X)}, v0, 4, 1", prio=9000))
        P.append(I(f"v_lshl_add_u32 {vr(V_T2)}, {vr(V_X)}, 5, {vr(V_T2)}", prio=9000))
        P.append(I(f"v_lshrrev_b32 {vr(V_X)}, 5, v0", prio=9000))
        P.append(I(f"v_lshl_add_u32 {vr(V_T2)}, {vr(V_X)}, 4, {vr(V_T2)}", prio=9000))
        for t in range(n):
            R = V_TMP + t
            P += p_epi_head(t, R, V_TMP + 5 + (t & 1))
            P.append(I(f"s_add_u32 {sr(S_T0 + (t & 1))}, {sr(S_QO)}, {t * 4096}"))
            for dp in range(4):
                B = V_S + 4 * ((4 * t + dp) % 8)
                for half in range(2):
                    dt = 2 * dp + half
                    if t >= 4:
                        b = V_T4 + 4 * half
                        for r in range(4): P.append(I(f"v_accvgpr_read_b32 {vr(b + r)}, {rO(t, dt, r)}"))
                    else: b = V_O + t * 32 + dt * 4
                    for r in range(4): P.append(I(f"v_mul_f32 {vr(b + r)}, {vr(b + r)}, {vr(R)}"))
                    P.append(I(f"v_cvt_pk_bf16_f32 {vr(B + 2 * half)}, {vr(b)}, {vr(b + 1)}"))
                    P.append(I(f"v_cvt_pk_bf16_f32 {vr(B + 2 * half + 1)}, {vr(b + 2)}, {vr(b + 3)}"))
                P.append(I(f"v_permlane16_swap_b32 {vr(B)}, {vr(B + 2)}"))
                P.append(I(f"v_permlane16_swap_b32 {vr(B + 1)}, {vr(B + 3)}"))
                P.append(I(f"buffer_store_dwordx4 {vr(B, 4)}, {vr(V_T2)}, {sr(S_OSRD, 4)}, {sr(S_T0 + (t & 1))} offen offset:{dp * 64} {OPT.o_pol}"))
    emit_sched(e, P, f"final n={n}")
    stamp(e, o, (1 if n == 5 else 7) + 4)

def gen(o):
    global OPT
    OPT = o
    _sched_cache.clear()
    e = Em()
    e.raw(f"; @launch grid=(256,1,1) block=(256,1,1) lds={LDS_BYTES}")
    e.raw('.amdgcn_target "amdgcn-amd-amdhsa--gfx950"')
    e.raw(".text")
    e.raw(f".globl {KNAME}")
    e.raw(".p2align 8")
    e.raw(f".type {KNAME},@function")
    e.label(KNAME)
    e("s_cmp_ge_u32 s2, 256")
    e("s_cbranch_scc1 L_exit")
    e("s_load_dwordx4 s[4:7], s[0:1], 0")
    e("s_load_dwordx4 s[8:11], s[0:1], 16")
    if o.diag: e(f"s_load_dwordx2 {sr(S_WS, 2)}, s[0:1], 40")
    stamp(e, o, 0)
    if o.spin_to:
        e("s_memrealtime s[88:89]"); e("s_memtime s[92:93]")
    if o.diag: e(f"s_memtime {sr(S_STAMP + 28, 2)}")
    e(f"v_lshrrev_b32 {vr(V_T0)}, 6, v0")
    e(f"v_and_b32 v0, 63, v0")
    e("s_nop 0")
    e(f"v_readfirstlane_b32 {sr(S_W)}, {vr(V_T0)}")
    e(f"s_and_b32 {sr(S_T0)}, s2, 7")
    e(f"s_lshr_b32 {sr(S_T1)}, s2, 3")
    e(f"s_and_b32 {sr(S_ROLE)}, {sr(S_T1)}, 1")
    e(f"s_andn2_b32 {sr(S_T1)}, {sr(S_T1)}, 1")
    e(f"s_lshl_b32 {sr(S_T0)}, {sr(S_T0)}, 5")
    e(f"s_add_u32 {sr(S_HEAD)}, {sr(S_T0)}, {sr(S_T1)}")
    e(f"s_mov_b32 {sr(S_BLK)}, 0")
    if o.prof: e("s_mov_b32 s92, 0")
    k = V_T0; g = V_T1; T = V_TMP
    e(f"v_lshrrev_b32 {vr(T)}, 3, v0")
    e(f"v_and_b32 {vr(T + 1)}, 7, v0")
    e(f"v_lshrrev_b32 {vr(T + 2)}, 1, {vr(T)}")
    e(f"v_lshlrev_b32 {vr(T + 3)}, 1, {vr(T + 2)}")
    e(f"s_cmp_lt_u32 {sr(S_W)}, 2")
    e(f"s_cselect_b64 vcc, -1, 0")
    for a1 in range(2):
        e(f"v_add_u32 {vr(T + 4)}, {4 * a1}, {vr(T + 2)}")
        e(f"v_cndmask_b32 {vr(T + 4)}, {vr(T + 3)}, {vr(T + 4)}, vcc")
        e(f"v_xor_b32 {vr(T + 4)}, {vr(T + 4)}, {vr(T + 1)}")
        e(f"v_lshlrev_b32 {vr(T + 4)}, 4, {vr(T + 4)}")
        e(f"v_lshl_add_u32 {vr(T + 4)}, {vr(T)}, 8, {vr(T + 4)}")
        e(f"v_add_u32 {vr(V_DMA + 2 * a1)}, {BIAS}, {vr(T + 4)}")
        e(f"v_mov_b32 {vr(V_DMA + 2 * a1 + 1)}, {vr(T + 4)}")
    e(f"v_and_b32 {vr(k)}, 15, v0")
    e(f"v_lshrrev_b32 {vr(g)}, 4, v0")
    e(f"v_lshlrev_b32 {vr(V_LANE16)}, 4, v0")
    e(f"v_lshrrev_b32 {vr(T)}, 3, {vr(k)}")
    e(f"v_lshlrev_b32 {vr(T)}, 11, {vr(T)}")
    e(f"v_and_b32 {vr(T + 1)}, 7, {vr(k)}")
    e(f"v_lshl_add_u32 {vr(T)}, {vr(T + 1)}, 7, {vr(T)}")
    e(f"v_bfe_u32 {vr(T + 1)}, {vr(k)}, 1, 3")
    for b in range(2):
        e(f"v_add_u32 {vr(T + 2)}, {4 * b}, {vr(g)}")
        e(f"v_xor_b32 {vr(T + 2)}, {vr(T + 2)}, {vr(T + 1)}")
        e(f"v_lshl_add_u32 {vr(V_AK + b)}, {vr(T + 2)}, 4, {vr(T)}")
    e(f"v_mul_u32_u24 {vr(V_OW)}, 272, {vr(k)}")
    e(f"v_lshl_add_u32 {vr(V_OW)}, {vr(g)}, 3, {vr(V_OW)}")
    e(f"v_bfe_u32 {vr(T)}, v0, 2, 2")
    e(f"v_and_b32 {vr(T + 1)}, 1, {vr(g)}")
    e(f"v_lshl_add_u32 {vr(T)}, {vr(T + 1)}, 2, {vr(T)}")
    e(f"v_lshrrev_b32 {vr(T + 1)}, 1, {vr(g)}")
    e(f"v_lshlrev_b32 {vr(T + 1)}, 11, {vr(T + 1)}")
    e(f"v_lshl_add_u32 {vr(T + 1)}, {vr(T)}, 7, {vr(T + 1)}")
    e(f"v_and_b32 {vr(T + 2)}, 1, v0")
    e(f"v_lshl_add_u32 {vr(T + 1)}, {vr(T + 2)}, 3, {vr(T + 1)}")
    e(f"v_add_u32 {vr(T + 1)}, {VREG}, {vr(T + 1)}")
    e(f"v_bfe_u32 {vr(T + 2)}, {vr(T)}, 1, 2")
    e(f"v_lshlrev_b32 {vr(T + 2)}, 1, {vr(T + 2)}")
    e(f"v_bfe_u32 {vr(T + 3)}, v0, 1, 1")
    for b in range(4):
        e(f"v_add_u32 {vr(T + 4)}, {2 * b}, {vr(T + 3)}")
        e(f"v_xor_b32 {vr(T + 4)}, {vr(T + 4)}, {vr(T + 2)}")
        e(f"v_lshl_add_u32 {vr(V_AV + b)}, {vr(T + 4)}, 4, {vr(T + 1)}")
    e(f"s_mov_b32 {sr(S_SCALE2)}, 0x{o.scale_bits:08x}")
    e(f"s_mov_b32 {sr(S_SCALE2 + 1)}, 0x{o.scale_bits:08x}")
    e(f"s_mov_b32 {sr(S_OOB)}, 0x{OOB:x}")
    e(f"v_mov_b32 {vr(T)}, 0x3f803f80")
    for i in range(4): e(f"v_accvgpr_write_b32 {ar(A_ONES + i)}, {vr(T)}")
    e(f"s_mul_i32 {sr(S_STG)}, {sr(S_W)}, {STGW}")
    e(f"s_add_u32 {sr(S_STG)}, {sr(S_STG)}, {STG0}")
    e(f"v_add_u32 {vr(V_OW)}, {sr(S_STG)}, {vr(V_OW)}")
    e("s_waitcnt lgkmcnt(0)")
    e(f"s_mov_b32 s12, s4"); e(f"s_mov_b32 s13, s5"); e(f"s_mov_b32 s14, {Q_BYTES}"); e(f"s_mov_b32 s15, 0x00020000")
    e(f"s_mov_b32 s20, s10"); e(f"s_mov_b32 s21, s11"); e(f"s_mov_b32 s22, {Q_BYTES}"); e(f"s_mov_b32 s23, 0x00020000")
    e(f"s_cmp_lt_u32 {sr(S_W)}, 2")
    e(f"s_cselect_b32 s16, s6, s8")
    e(f"s_cselect_b32 s17, s7, s9")
    e(f"s_sub_u32 s16, s16, {BIAS}")
    e(f"s_subb_u32 s17, s17, 0")
    e(f"s_add_u32 {sr(S_T0)}, {sr(S_HEAD)}, 2")
    e(f"s_mul_i32 s18, {sr(S_T0)}, {HEAD_KV}")
    e(f"s_add_u32 s18, s18, {BIAS}")
    e(f"s_mov_b32 s19, 0x00020000")
    e(f"s_and_b32 {sr(S_T0)}, {sr(S_W)}, 1")
    e(f"s_lshl_b32 {sr(S_T0)}, {sr(S_T0)}, 12")
    e(f"s_mul_i32 {sr(S_OFF0)}, {sr(S_HEAD)}, {HEAD_KV}")
    e(f"s_add_u32 {sr(S_OFF0)}, {sr(S_OFF0)}, {sr(S_T0)}")
    e(f"s_lshr_b32 {sr(S_T1)}, {sr(S_W)}, 1")
    e(f"s_mul_i32 {sr(S_T2)}, {sr(S_T1)}, {VREG}")
    e(f"s_add_u32 {sr(S_M0R)}, {sr(S_T0)}, {sr(S_T2)}")
    e(f"s_mul_i32 {sr(S_T1)}, {sr(S_T1)}, 8192")
    e(f"s_add_u32 {sr(S_M0P)}, {sr(S_M0R)}, {sr(S_T1)}")
    e(f"v_and_b32 {vr(V_X)}, 1, v0")
    e(f"v_cmp_eq_u32 vcc, 0, {vr(V_X)}")
    e(f"v_mov_b32 {vr(V_X)}, 0xeeeeeeee")
    e(f"v_mov_b32 {vr(V_X + 1)}, 0x44444444")
    e(f"v_cndmask_b32 {vr(V_IDX)}, {vr(V_X)}, {vr(V_X + 1)}, vcc")
    cf = struct.unpack("<f", struct.pack("<I", o.scale_bits))[0]
    def bf16_rne(x):
        u = struct.unpack("<I", struct.pack("<f", x))[0]
        return (u + 0x7fff + ((u >> 16) & 1)) >> 16
    c_hi = bf16_rne(cf); c_lo = bf16_rne(cf - struct.unpack("<f", struct.pack("<I", c_hi << 16))[0])
    X = V_X
    e(f"v_lshrrev_b32 {vr(X)}, 4, v0")
    e(f"v_bfe_u32 {vr(X + 1)}, v0, 2, 2")
    e(f"v_cmp_eq_u32 vcc, {vr(X)}, {vr(X + 1)}")
    e(f"v_and_b32 {vr(X + 2)}, 1, v0")
    e(f"v_lshlrev_b32 {vr(X + 2)}, 4, {vr(X + 2)}")
    e(f"v_bfe_u32 {vr(X + 3)}, v0, 1, 1")
    for (cv, base) in ((c_hi, A_SC), (c_lo, A_SC + 6)):
        e(f"v_mov_b32 {vr(X)}, {cv}")
        e(f"v_lshlrev_b32 {vr(X)}, {vr(X + 2)}, {vr(X)}")
        e(f"v_cndmask_b32 {vr(X)}, 0, {vr(X)}, vcc")
        e(f"v_mul_u32_u24 {vr(X + 1)}, {vr(X + 3)}, {vr(X + 3)}")
        e(f"v_sub_u32 {vr(X + 1)}, 0, {vr(X + 1)}")
        e(f"v_and_b32 {vr(V_TMP + 1)}, {vr(X + 1)}, {vr(X)}")
        e(f"v_xor_b32 {vr(V_TMP)}, {vr(V_TMP + 1)}, {vr(X)}")
        for i in (0, 1, 4, 5): e(f"v_accvgpr_write_b32 {ar(base + i)}, 0")
        e(f"v_accvgpr_write_b32 {ar(base + 2)}, {vr(V_TMP)}")
        e(f"v_accvgpr_write_b32 {ar(base + 3)}, {vr(V_TMP + 1)}")
    e(f"s_cmp_eq_u32 {sr(S_ROLE)}, 0")
    e("s_cbranch_scc0 L_role1")
    for (n1, n2, r) in ((5, 4, "r0"), (4, 5, "r1")):
        if r == "r1": e.label("L_role1")
        o.ctx = 1
        emit_cold(e, n1, o, r)
        emit_loop(e, n1, "q", o, f"{r}a")
        o.ctx = 15
        emit_trans(e, n1, n2, o)
        o.ctx = 2
        emit_loop(e, n2, "o", o, f"{r}b")
        emit_final(e, n2, o)
        e("s_branch L_done")
    e.label("L_done")
    if o.enc is not None:
        e("s_waitcnt vmcnt(0) lgkmcnt(0)")
        e("s_sub_u32 s94, s90, s88")
        e(f"s_lshl_b32 s94, s94, {o.enc_shift}")
        e("s_memrealtime s[90:91]"); e("s_waitcnt lgkmcnt(0)")
        e("s_add_u32 s88, s90, s94")
        e.label("L_spin2")
        e("s_memrealtime s[90:91]"); e("s_waitcnt lgkmcnt(0)")
        e("s_sub_u32 s91, s90, s88")
        e("s_cmp_lt_i32 s91, 0")
        e("s_cbranch_scc1 L_spin2")
    if o.spin_to:
        e("s_waitcnt vmcnt(0) lgkmcnt(0)")
        if o.spin_mode == "abs":
            e(f"s_add_u32 s88, s88, {o.spin_to}")
        else:
            e("s_memtime s[94:95]"); e("s_memrealtime s[90:91]"); e("s_waitcnt lgkmcnt(0)")
            e("s_sub_u32 s94, s94, s92")
            e(f"s_lshr_b32 s94, s94, {o.spin_to}")
            e("s_add_u32 s88, s90, s94")
        e.label("L_spin")
        e("s_memrealtime s[90:91]"); e("s_waitcnt lgkmcnt(0)")
        e("s_sub_u32 s91, s90, s88")
        e("s_cmp_lt_i32 s91, 0")
        e("s_cbranch_scc1 L_spin")
    if o.diag:
        e("s_waitcnt vmcnt(0) lgkmcnt(0)")
        stamp(e, o, 13)
        e(f"s_memtime {sr(S_STAMP + 30, 2)}")
        e("s_waitcnt lgkmcnt(0)")
        e(f"s_lshl_b32 {sr(S_T0)}, s2, 2")
        e(f"s_add_u32 {sr(S_T0)}, {sr(S_T0)}, {sr(S_W)}")
        e(f"s_lshl_b32 {sr(S_T0)}, {sr(S_T0)}, 7")
        e(f"s_mov_b32 s4, {sr(S_WS)}"); e(f"s_mov_b32 s5, {sr(S_WS + 1)}"); e("s_mov_b32 s6, 0x200000"); e("s_mov_b32 s7, 0x00020000")
        if o.prof:
            e(f"v_lshlrev_b32 v2, 2, v0")
            e(f"s_lshl_b32 s93, {sr(S_T0)}, 1")
            e(f"s_add_u32 s93, s93, 0x20000")
            e(f"v_add_u32 v2, s93, v2")
            e(f"buffer_store_dword {vr(V_PROF)}, v2, s[4:7], 0 offen")
            e("s_waitcnt vmcnt(0)")
        for i in range(32): e(f"v_writelane_b32 v1, {sr(S_STAMP + i)}, {i}") if i else e(f"v_mov_b32 v1, {sr(S_STAMP)}")
        e(f"v_lshlrev_b32 v2, 2, v0")
        e(f"v_add_u32 v2, {sr(S_T0)}, v2")
        e("v_cmp_gt_u32 vcc, 32, v0")
        e("s_and_saveexec_b64 s[86:87], vcc")
        e("buffer_store_dword v1, v2, s[4:7], 0 offen")
        e("s_waitcnt vmcnt(0)")
    e.label("L_exit")
    e("s_endpgm")
    e.raw('.section .rodata,"a"')
    e.raw(".p2align 6")
    e.raw(f".amdhsa_kernel {KNAME}")
    e.raw("  .amdhsa_next_free_vgpr 512")
    e.raw("  .amdhsa_next_free_sgpr 96")
    e.raw("  .amdhsa_accum_offset 256")
    e.raw("  .amdhsa_group_segment_fixed_size 0")
    e.raw("  .amdhsa_kernarg_size 48")
    e.raw("  .amdhsa_user_sgpr_count 2")
    e.raw("  .amdhsa_user_sgpr_kernarg_segment_ptr 1")
    e.raw("  .amdhsa_system_sgpr_workgroup_id_x 1")
    e.raw(".end_amdhsa_kernel")
    return e.text()

def default_opt():
    import struct, math
    o = Opt()
    o.pv_order = 'dt'; o.lat_exp = 3; o.ephase = 0; o.m_back = 0; o.v_start = 0; o.lat_ds = 6; o.dma_step = 3
    o.diag = False; o.diag_cyc = False
    o.epi_per_gap = 2; o.q_first = 5; o.exp_k0 = 0; o.c_t0 = 2000; o.c_dt = 700; o.final_lds = True; o.colddiag = False; o.enc = None; o.ctx = 0; o.enc_shift = 3; o.prof = False; o.spin_to = 0; o.spin_mode = "abs"; o.x_nobar = False; o.x_nodma = False; o.x_novm = False
    o.kv_pol = ""; o.q_pol = "nt"; o.o_pol = "sc0 sc1"; o.o1_pol = ""
    o.scale_bits = struct.unpack("<I", struct.pack("<f", (128 ** -0.5) * math.log2(math.e)))[0]
    return o

if __name__ == "__main__":
    ap = argparse.ArgumentParser()
    ap.add_argument("out")
    ap.add_argument("--diag", action="store_true")
    ap.add_argument("--cyc", action="store_true")
    ap.add_argument("--set", action="append", default=[])
    a = ap.parse_args()
    o = default_opt()
    o.diag = a.diag; o.diag_cyc = a.cyc
    for kv in a.set:
        k, v = kv.split("=")
        setattr(o, k, eval(v))
    open(a.out, "w").write(gen(o))
```
